```python
import torch

def _softmax(x, axis=-1):
    return torch.softmax(x, dim=axis)
def _gelu(x):
    return torch.nn.functional.gelu(x, approximate="tanh")
def _silu(x):
    return torch.nn.functional.silu(x)
def _sigmoid(x):
    return torch.sigmoid(x)
def _layernorm(x, axis=-1, eps=1e-5):
    m = x.mean(dim=axis, keepdim=True)
    v = x.var(dim=axis, keepdim=True, unbiased=False)
    return (x - m) / torch.sqrt(v + eps)
def _scatter_add(tgt, idx, src, axis=0):
    return tgt.clone().index_add_(axis, idx, src)
def _segment_sum(src, seg, n):
    out = torch.zeros((n,) + src.shape[1:], dtype=src.dtype)
    return out.index_add_(0, seg, src)
def _pad(x, pw):
    flat = tuple(v for pair in reversed(pw) for v in pair)
    return torch.nn.functional.pad(x, flat)

kernel_name = 'concat_heads__gqa_block_cached__gqa_block_cached__near_ridge'

def setup_inputs():

    _w = (lambda a: (lambda t: t.to(torch.bfloat16) if t.is_floating_point() else t)(torch.as_tensor(a)))
    def _A_setup():
        B, Sq, D = 32, 64, 448
        Hq, Hkv, Sk, Dh = 16, 8, 512, 256
        assert Hq % Hkv == 0, (Hq, Hkv)
        return {
            "x": _w((lambda *s: torch.randn(*s, dtype=torch.bfloat16) * 0.8)(B, Sq, D)),
            "k_cache": _w((lambda *s: torch.randn(*s, dtype=torch.bfloat16) * 0.8)(B, Hkv, Sk, Dh)),
            "v_cache": _w((lambda *s: torch.randn(*s, dtype=torch.bfloat16) * 0.05)(B, Hkv, Sk, Dh)),
            "wq": _w((lambda *s: torch.randn(*s, dtype=torch.bfloat16) * 0.8)(D, Hq * Dh) * (D ** -0.5)),
            "wo": _w((lambda *s: torch.randn(*s, dtype=torch.bfloat16) * 0.05)(Hq * Dh, D) * ((Hq * Dh) ** -0.5)),
        }
    _A_in = _A_setup()

    def _B_setup():
        B, Sq, D = 32, 64, 448
        Hq, Hkv, Sk, Dh = 16, 8, 512, 256
        assert Hq % Hkv == 0, (Hq, Hkv)
        return {
            "x": _w((lambda *s: torch.randn(*s, dtype=torch.bfloat16) * 0.8)(B, Sq, D)),
            "k_cache": _w((lambda *s: torch.randn(*s, dtype=torch.bfloat16) * 0.8)(B, Hkv, Sk, Dh)),
            "v_cache": _w((lambda *s: torch.randn(*s, dtype=torch.bfloat16) * 0.05)(B, Hkv, Sk, Dh)),
            "wq": _w((lambda *s: torch.randn(*s, dtype=torch.bfloat16) * 0.8)(D, Hq * Dh) * (D ** -0.5)),
            "wo": _w((lambda *s: torch.randn(*s, dtype=torch.bfloat16) * 0.05)(Hq * Dh, D) * ((Hq * Dh) ** -0.5)),
        }
    _B_in = _B_setup()

    return {
        "A_x": _A_in["x"],
        "A_k_cache": _A_in["k_cache"],
        "A_v_cache": _A_in["v_cache"],
        "A_wq": _A_in["wq"],
        "A_wo": _A_in["wo"],
        "B_x": _B_in["x"],
        "B_k_cache": _B_in["k_cache"],
        "B_v_cache": _B_in["v_cache"],
        "B_wq": _B_in["wq"],
        "B_wo": _B_in["wo"],
    }

def reference(A_x, A_k_cache, A_v_cache, A_wq, A_wo, B_x, B_k_cache, B_v_cache, B_wq, B_wo):
    def _A_ref(x, k_cache, v_cache, wq, wo):
        B, Sq, D = x.shape
        Hq, Dh = 16, 256
        Hkv = k_cache.shape[1]
        rep = Hq // Hkv
        q = (lambda x, *d: x.permute(*d))((x @ wq).reshape(B, Sq, Hq, Dh), 0, 2, 1, 3)
        k = (lambda x, n, axis: torch.repeat_interleave(x, n, dim=axis))(k_cache, rep, axis=1)
        v = (lambda x, n, axis: torch.repeat_interleave(x, n, dim=axis))(v_cache, rep, axis=1)
        scores = torch.einsum("bhqd,bhkd->bhqk", q, k) * (Dh ** -0.5)
        p = _softmax(scores, axis=-1)
        o = torch.einsum("bhqk,bhkd->bhqd", p, v)
        return (lambda x, *d: x.permute(*d))(o, 0, 2, 1, 3).reshape(B, Sq, Hq * Dh) @ wo

    def _B_ref(x, k_cache, v_cache, wq, wo):
        B, Sq, D = x.shape
        Hq, Dh = 16, 256
        Hkv = k_cache.shape[1]
        rep = Hq // Hkv
        q = (lambda x, *d: x.permute(*d))((x @ wq).reshape(B, Sq, Hq, Dh), 0, 2, 1, 3)
        k = (lambda x, n, axis: torch.repeat_interleave(x, n, dim=axis))(k_cache, rep, axis=1)
        v = (lambda x, n, axis: torch.repeat_interleave(x, n, dim=axis))(v_cache, rep, axis=1)
        scores = torch.einsum("bhqd,bhkd->bhqk", q, k) * (Dh ** -0.5)
        p = _softmax(scores, axis=-1)
        o = torch.einsum("bhqk,bhkd->bhqd", p, v)
        return (lambda x, *d: x.permute(*d))(o, 0, 2, 1, 3).reshape(B, Sq, Hq * Dh) @ wo

    a = _A_ref(A_x, A_k_cache, A_v_cache, A_wq, A_wo)
    b = _B_ref(B_x, B_k_cache, B_v_cache, B_wq, B_wo)
    return torch.concatenate([a, b], axis=-1)
```

```python
import re


def R(p, a, n=1):
    if n == 1:
        return f"{p}{a}"
    return f"{p}[{a}:{a+n-1}]"


def regs(p, a, n=1):
    return {f"{p}{a+i}" for i in range(n)}


class I:
    __slots__ = ("t", "k", "d", "u", "meta")

    def __init__(self, t, k, d=(), u=(), meta=None):
        self.t = t
        self.k = k
        self.d = set(d)
        self.u = set(u)
        self.meta = meta or {}

    def __repr__(self):
        return self.t


def opnd(x):
    if isinstance(x, tuple):
        p, a, n = x if len(x) == 3 else (x[0], x[1], 1)
        return R(p, a, n), regs(p, a, n)
    if isinstance(x, str) and re.fullmatch(r"-?[vas]\d+", x):
        return x, {x.lstrip("-")}
    if x in ("vcc", "m0", "exec"):
        return x, {x}
    return str(x), set()


def mfma(D, A, B, C):
    dt, ds = opnd((D[0], D[1], 4))
    at, as_ = opnd((A[0], A[1], 4))
    bt, bs = opnd((B[0], B[1], 4))
    if C == 0:
        ct, cs = "0", set()
    else:
        ct, cs = opnd((C[0], C[1], 4))
    return I(f"v_mfma_f32_16x16x32_bf16 {dt}, {at}, {bt}, {ct}", "mfma", ds, as_ | bs | cs,
             {"C": cs, "AB": as_ | bs, "D": ds})


def valu(op, dst, *src, kind="valu", extra_d=(), extra_u=(), rmw=False):
    dt, ds = opnd(dst)
    ts, us = [], set()
    for s in src:
        t, u = opnd(s)
        ts.append(t)
        us |= u
    if rmw:
        us |= ds
    return I(f"{op} {dt}, " + ", ".join(ts), kind, ds | set(extra_d), us | set(extra_u))


def trans(op, dst, src):
    return valu(op, dst, src, kind="trans")


def swap(op, a, b):
    return I(f"{op} {a}, {b}", "swap", {a, b}, {a, b})


def salu(op, dst, *src, scc=True, uses_scc=False):
    dt, ds = opnd(dst)
    ts, us = [], set()
    for s in src:
        t, u = opnd(s)
        ts.append(t)
        us |= u
    if scc:
        ds = ds | {"scc"}
    if uses_scc:
        us = us | {"scc"}
    return I(f"{op} {dt}" + "".join(", " + t for t in ts), "salu", ds, us)


def ds_read(op, dst, addr, off):
    dt, ds = opnd(dst)
    assert 0 <= off < 65536, off
    return I(f"{op} {dt}, {addr} offset:{off}", "dsr", ds, {addr})


def ds_write(op, addr, src, off):
    st, ss = opnd(src)
    assert 0 <= off < 65536, off
    return I(f"{op} {addr}, {st} offset:{off}", "dsw", (), {addr} | ss, {"data": ss})


def dma(voff, srd, soff, imm, flags="", chunk=None):
    assert 0 <= imm < 4096
    o = f" offset:{imm}" if imm else ""
    f = (" " + flags) if flags else ""
    return I(f"buffer_load_dwordx4 {voff}, s[{srd}:{srd+3}], {soff} offen{o}{f} lds", "dma", (),
             {voff, "m0", soff} | regs("s", srd, 4), {"chunk": chunk})


def vload(op, dst, voff, srd, soff, imm=0, flags="", track=True):
    dt, ds = opnd(dst)
    o = f" offset:{imm}" if imm else ""
    f = (" " + flags) if flags else ""
    u = {voff} | regs("s", srd, 4)
    if isinstance(soff, str) and soff.startswith("s"):
        u.add(soff)
    return I(f"{op} {dt}, {voff}, s[{srd}:{srd+3}], {soff} offen{o}{f}", "vld", ds if track else (), u)


def vstore(op, src, voff, srd, soff, imm=0, flags=""):
    st, ss = opnd(src)
    o = f" offset:{imm}" if imm else ""
    f = (" " + flags) if flags else ""
    u = {voff} | regs("s", srd, 4) | ss
    if isinstance(soff, str) and soff.startswith("s"):
        u.add(soff)
    return I(f"{op} {st}, {voff}, s[{srd}:{srd+3}], {soff} offen{o}{f}", "vst", (), u,
             {"data": ss, "wide": len(ss) >= 3})


def raw(t, k="raw", d=(), u=()):
    return I(t, k, d, u)


def label(n):
    return I(f"{n}:", "label")


def nop(n):
    return I(f"s_nop {n}", "nop", meta={"n": n + 1})


def wait(vm=None, lg=None):
    s = "s_waitcnt"
    if vm is not None:
        assert 0 <= vm <= 63
        s += f" vmcnt({vm})"
    if lg is not None:
        assert 0 <= lg <= 15
        s += f" lgkmcnt({lg})"
    return I(s, "wait", meta={"vm": vm, "lg": lg})


VALUK = ("valu", "trans", "swap")
VMEMK = ("dma", "vld", "vst")


def states(ins):
    if ins.k == "label":
        return 0
    if ins.k == "nop":
        return ins.meta["n"]
    return 1


def need_states(p, c):
    n = 0
    cv = c.k in VALUK
    if p.k in VALUK:
        vd = {r for r in p.d if r[0] in "va" and r not in ("vcc",)}
        if c.k == "mfma" and vd & c.u:
            n = max(n, 2)
        if c.k == "swap" and vd & c.u:
            n = max(n, 2)
        if p.k == "trans" and cv and c.k != "trans" and vd & c.u:
            n = max(n, 1)
        if p.k == "trans" and c.k == "trans" and vd & c.u:
            n = max(n, 1)
        if "readfirstlane" in c.t or "readlane" in c.t:
            if vd & c.u:
                n = max(n, 1)
        sd = {r for r in p.d if r[0] == "s" or r == "vcc"}
        sd.discard("scc")
        if sd & c.u:
            if cv:
                n = max(n, 2)
            elif c.k in VMEMK:
                n = max(n, 5)
            else:
                n = max(n, 1)
    if p.k == "mfma":
        D = p.meta["D"]
        if c.k == "mfma":
            if D & c.meta["AB"]:
                n = max(n, 8)
            if D & c.meta["C"] and c.meta["C"] != D:
                n = max(n, 6)
            if D & c.meta["D"] and c.meta["C"] != D:
                n = max(n, 6)
        elif cv:
            if D & (c.u | c.d):
                n = max(n, 8)
            if p.meta["C"] & c.d:
                n = max(n, 3)
        elif c.k in VMEMK or c.k in ("dsr", "dsw"):
            if D & (c.u | c.d):
                n = max(n, 8)
    if p.k == "salu" and "m0" in p.d and c.k == "dma":
        n = max(n, 1)
    if p.k == "vst" and p.meta.get("wide") and (p.meta["data"] & c.d):
        n = max(n, 2)
    if p.k == "dsw" and (p.meta["data"] & c.d) and cv:
        n = max(n, 2)
    return n


def pad_hazards(prog, log=None):
    out = []
    added = 0
    for ins in prog:
        if ins.k not in ("label", "nop", "wait"):
            dist = 0
            need = 0
            for p in reversed(out[-24:]):
                r = need_states(p, ins)
                if r > dist:
                    need = max(need, r - dist)
                dist += states(p)
                if dist >= 10:
                    break
            if need:
                out.append(nop(need - 1))
                added += need
                if log is not None:
                    log.append((len(out), need, ins.t))
        out.append(ins)
    return out, added


def insert_lgkm(prog, cover_next=0):
    out = []
    pend = []
    nds = 0
    ds_before = []
    nw = 0

    def outstanding_after(seq, upto):
        return upto - seq - 1

    done = -1
    for ins in prog:
        if ins.k == "wait" and ins.meta.get("lg") is not None:
            done = max(done, nds - 1 - ins.meta["lg"])
        touch = ins.u | ins.d
        need = -1
        for seq, d in pend:
            if seq > done and d & touch:
                need = max(need, seq)
        if need >= 0:
            pos = len(out)
            if ins.k == "mfma":
                q = len(out) - 1
                while q >= 0 and out[q].k not in ("mfma", "label", "barrier", "branch"):
                    q -= 1
                if q >= 0 and out[q].k == "mfma" and ds_before[q + 1 if q + 1 < len(ds_before) else q] > need - (0 if q + 1 < len(ds_before) else 0):
                    nb = ds_before[q + 1] if q + 1 < len(ds_before) else nds
                    if nb > need:
                        pos = q + 1
            nb = ds_before[pos] if pos < len(ds_before) else nds
            k = min(15, nb - need - 1)
            w = wait(lg=k)
            if pos < len(out) and out[pos].k == "wait" and out[pos].meta.get("lg") is None:
                w = wait(vm=out[pos].meta["vm"], lg=k)
                out[pos] = w
            elif pos < len(out) and out[pos].k == "wait" and out[pos].meta.get("lg") is not None:
                w = wait(vm=out[pos].meta["vm"], lg=min(k, out[pos].meta["lg"]))
                out[pos] = w
            else:
                out.insert(pos, w)
                ds_before.insert(pos, nb)
                nw += 1
            done = max(done, nb - 1 - k)
        ds_before.append(nds)
        out.append(ins)
        if ins.k in ("dsr", "dsw"):
            pend.append((nds, set(ins.d)))
            nds += 1
            pend = [(s, d) for s, d in pend if s > done]
    return out, nw
```

```python
import sys, math
from asmlib import *

NAME = "concat_heads__gqa_block_cached__gqa_block_cached__near_ridge_kernel"

PS = 1056
SLOT = 16 * PS
NSLOT = 9
EXCH = NSLOT * SLOT
LDS_BYTES = 163840

PX = 0
A0, A1 = 128, 160
E = 192
NEGM = 208
L_, C_, RL = 216, 218, 220
AK, AV, AQ, AO = 222, 225, 228, 231
AXW = 234
AXR = 236
VL, VV, VO = "v237", "v238", "v239"
T = 240
TQ, TO = "v248", "v249"
DUMMY = "v250"
TID = "v251"
LANE = "v252"
QB = 0
FR, NFR = 64, 8
BF = 96
QA = 128
OUT = 128
SK, SV, SQ, SO, SX, SW, SOUT, SDBG, SCODE = 8, 12, 16, 20, 24, 28, 32, 36, 40
sM0W, sGK, sGQ, sGO = "s44", "s45", "s46", "s47"
sOFF = "s48"
sC, sT2 = "s49", "s50"
sWV, sJ, sB, sBR = "s51", "s52", "s53", "s54"
sRET = 56
sP = 58
sG = 64
sTMP = 70

CSCALE = math.log2(math.e) / 16.0


def f32hex(x):
    import struct
    return "0x%08x" % struct.unpack("<I", struct.pack("<f", x))[0]


class Chunk:
    def __init__(self, name, typ, srd, voff, gbase, const, G, flags, hbm):
        self.name, self.typ, self.srd, self.voff, self.gbase, self.const, self.G = name, typ, srd, voff, gbase, const, G
        self.flags, self.hbm = flags, hbm
        self.slot = None
        self.cstep = None
        self.istep = None

    def pieces(self):
        out = []
        for j in range(4):
            s = []
            if j == 0:
                s.append(salu("s_add_u32", "m0", sM0W, self.slot * SLOT))
            s.append(salu("s_add_u32", sOFF, self.gbase, self.const + j * (self.G - PS)))
            out.append((s, dma(self.voff, self.srd, sOFF, j * PS, self.flags, chunk=self.name)))
        return out

    def addr(self, pat, off):
        w, r = divmod(self.slot, 3)
        return f"v{pat + w}", r * SLOT + off


def ch_x(c):
    return Chunk(f"x{c}", "x", SX, VO, sGO, 480 + 16 * c * 896, 896, CFG["xflags"], True)


def ch_q(it, s, i):
    return Chunk(f"q{it}_{s}_{i}", "W", SQ, VL, sGQ, (32 * s + 4 * i) * 8192 + it * 1024, 8192, CFG["wflags"], False)


def ch_k(it, j):
    blk, jj = divmod(j, 4)
    return Chunk(f"k{it}_{j}", "K", SK, VL, sGK, it * 262144 + (128 * blk + 2 * jj) * 512, 4096, "nt", True)


def ch_v(it, slab, blk):
    return Chunk(f"v{it}_{slab}_{blk}", "V", SV, VV, sGK, it * 262144 + 128 * blk * 512 + slab * 128, 4096, "nt", True)


def ch_o(it, slab, o, i):
    db, hh = divmod(o, 2)
    row = it * 512 + hh * 256 + 64 * slab + 32 * db + 16 * i
    return Chunk(f"o{it}_{slab}_{o}_{i}", "W", SO, VO, sGO, 480 + row * 896, 896, CFG["wflags"], False)


class Step:
    def __init__(self, name, chunks):
        self.name = name
        self.chunks = chunks
        self.build = None
        self.mf = []
        self.ds = []


CFG = dict(xflags="", wflags="", L=7, stop=None)

fragctr = [0]


class Frag:
    def __init__(self):
        self.idx = fragctr[0]
        fragctr[0] += 1
        self.reg = FR + 4 * (self.idx % NFR)
        self.last_use = None


def xreg(n, s):
    return PX + 8 * (s + 2) + 4 * n


def preg(j, n):
    return PX + 8 * j + 4 * n


def qacc(Tt, n):
    return QA + 16 * (Tt // 2) + 8 * n + 4 * (Tt & 1)


def qb(s, n):
    return QB + 8 * s + 4 * n


def sbuf(j):
    return A0 + 16 * (j & 1)


def stile(j, t, n):
    return sbuf(j) + 8 * n + 4 * t


def oacc(slab, dt, n):
    return (A1 if slab & 1 else A0) + 16 * (dt // 2) + 8 * n + 4 * (dt & 1)


def outacc(Tt, p):
    return OUT + 16 * Tt + 4 * p


def tr(dst, ch, pat, off):
    a, o = ch.addr(pat, off)
    return ds_read("ds_read_b64_tr_b16", ("a", dst, 2), a, o)


def step_q(it, s):
    A, B = ch_q(it, s, 0), ch_q(it, s, 1)
    st = Step(f"Q{it}_{s}", [A, B])

    def build():
        for Tt in range(16):
            f = Frag()
            u = len(st.mf)
            st.ds.append((tr(f.reg, A, AQ, Tt * 32), u, f))
            st.ds.append((tr(f.reg + 2, B, AQ, Tt * 32), u, f))
            for n in range(2):
                acc = ("a", qacc(Tt, n))
                st.mf.append(mfma(acc, ("a", f.reg), ("v", xreg(n, s)), 0 if s == 0 else acc))
            f.lu = len(st.mf) - 1
    st.build = build
    return st


def step_k(it, j):
    Kc = ch_k(it, j)
    st = Step(f"K{it}_{j}", [Kc])

    def build():
        for t in range(2):
            for s in range(8):
                f = Frag()
                u = len(st.mf)
                a, o = Kc.addr(AK, t * 512 + s * 64)
                st.ds.append((ds_read("ds_read_b128", ("a", f.reg, 4), a, o), u, f))
                for n in range(2):
                    acc = ("v", stile(j, t, n))
                    c = acc if s else (0 if j == 0 else ("v", NEGM + 4 * n))
                    st.mf.append(mfma(acc, ("a", f.reg), ("a", qb(s, n)), c))
                f.lu = len(st.mf) - 1
    st.build = build
    return st


def step_v(it, slab, blk):
    Vc = ch_v(it, slab, blk)
    st = Step(f"V{it}_{slab}_{blk}", [Vc])

    def build():
        for jj in range(4):
            for dt in range(4):
                f = Frag()
                u = len(st.mf)
                st.ds.append((tr(f.reg, Vc, AV, (2 * jj) * 128 + dt * 32), u, f))
                st.ds.append((tr(f.reg + 2, Vc, AV, (2 * jj + 1) * 128 + dt * 32), u, f))
                for n in range(2):
                    acc = ("v", oacc(slab, dt, n))
                    st.mf.append(mfma(acc, ("a", f.reg), ("v", preg(4 * blk + jj, n)), 0 if (blk == 0 and jj == 0) else acc))
                f.lu = len(st.mf) - 1
    st.build = build
    return st


octr = [0]


def step_o(it, slab, o, exoff=0, axr=AXR):
    A, B = ch_o(it, slab, o, 0), ch_o(it, slab, o, 1)
    st = Step(f"O{it}_{slab}_{o}", [A, B])
    hh = o % 2

    def build():
        bf = BF + 16 * (octr[0] & 1)
        first = octr[0] == 0
        octr[0] += 1
        for Tt in range(7):
            f = Frag()
            u = len(st.mf)
            if Tt == 0:
                st.ds.append((ds_read("ds_read_b128", ("a", bf, 4), f"v{axr}", exoff + (hh * 4) * 1024), u, None))
            st.ds.append((tr(f.reg, A, AO, Tt * 32), u, f))
            st.ds.append((tr(f.reg + 2, B, AO, Tt * 32), u, f))
            if Tt == 0:
                for p in range(1, 4):
                    st.ds.append((ds_read("ds_read_b128", ("a", bf + 4 * p, 4), f"v{axr}", exoff + (hh * 4 + p) * 1024), u + p, None))
            for p in range(4):
                acc = ("a", outacc(Tt, p))
                st.mf.append(mfma(acc, ("a", f.reg), ("a", bf + 4 * p), 0 if first else acc))
            f.lu = len(st.mf) - 1
    st.build = build
    return st


def v(n):
    return f"v{n}"


def xlane(op, x, t):
    return [valu("v_mov_b32", t, x), swap("v_permlane32_swap_b32", t, x), valu(op, x, x, t),
            valu("v_mov_b32", t, x), swap("v_permlane16_swap_b32", t, x), valu(op, x, x, t)]


def max8(dst, r):
    return [valu("v_max3_f32", dst, v(r), v(r + 1), v(r + 2)), valu("v_max3_f32", dst, dst, v(r + 3), v(r + 4)),
            valu("v_max3_f32", dst, dst, v(r + 5), v(r + 6)), valu("v_max_f32", dst, dst, v(r + 7))]


def interleave(a, b):
    out = []
    for i in range(max(len(a), len(b))):
        if i < len(a):
            out.append(a[i])
        if i < len(b):
            out.append(b[i])
    return out


def task_firstmax():
    seqs = []
    for n in range(2):
        m, t = v(T + n), v(T + 2 + n)
        r = sbuf(0) + 8 * n
        s = max8(m, r) + xlane("v_max_f32", m, t)
        s.append(valu("v_ceil_f32", m, m))
        for i in range(4):
            s.append(valu("v_sub_f32", v(NEGM + 4 * n + i), 0, m))
        s.append(valu("v_mov_b32", v(L_ + n), 0))
        for i in range(8):
            s.append(valu("v_sub_f32", v(r + i), v(r + i), m))
        seqs.append(s)
    return interleave(*seqs)


def task_exp(j):
    out = []
    for n in range(2):
        r = sbuf(j) + 8 * n
        e = E + 8 * n
        c = v(C_ + n)
        for i in range(8):
            out.append(trans("v_exp_f32", v(e + i), v(r + i)))
            if i == 2:
                out.append(valu("v_add_f32", c, v(e), v(e + 1)))
            elif i > 2:
                out.append(valu("v_add_f32", c, c, v(e + i - 1)))
        out.append(valu("v_add_f32", c, c, v(e + 7)))
    return out


def task_cvt(j):
    out = []
    for n in range(2):
        for i in range(4):
            out.append(valu("v_cvt_pk_bf16_f32", v(preg(j, n) + i), v(E + 8 * n + 2 * i), v(E + 8 * n + 2 * i + 1)))
    return out


def task_chk():
    return [valu("v_max_f32", v(T), v(C_), v(C_ + 1)),
            I(f"v_cmp_lt_f32 vcc, {sT2}, v{T}", "valu", {"vcc"}, {sT2, v(T)})]


def task_sfin():
    seqs = []
    for n in range(2):
        s = xlane("v_add_f32", v(L_ + n), v(T + 2 + n))
        s.append(trans("v_rcp_f32", v(RL + n), v(L_ + n)))
        seqs.append(s)
    return interleave(*seqs)


def task_qfin():
    out = []
    for db in range(8):
        for n in range(2):
            src = QA + 16 * db + 8 * n
            e = E + 8 * n
            t = T + 4 * n
            for i in range(8):
                out.append(valu("v_accvgpr_read_b32", v(e + i), f"a{src+i}"))
            for i in range(8):
                out.append(valu("v_mul_f32", v(e + i), sC, v(e + i)))
            for i in range(4):
                out.append(valu("v_cvt_pk_bf16_f32", v(t + i), v(e + 2 * i), v(e + 2 * i + 1)))
            out.append(swap("v_permlane32_swap_b32", v(t), v(t + 2)))
            out.append(swap("v_permlane32_swap_b32", v(t + 1), v(t + 3)))
            out.append(swap("v_permlane16_swap_b32", v(t), v(t + 2)))
            out.append(swap("v_permlane16_swap_b32", v(t + 1), v(t + 3)))
            for i in range(4):
                out.append(valu("v_accvgpr_write_b32", f"a{qb(db, n)+i}", v(t + i)))
    groups = [out[i * 28:(i + 1) * 28] for i in range(16)]
    res = []
    for g in range(0, 16, 2):
        a, b = groups[g], groups[g + 1]
        res += a[:20] + b[:8] + a[20:22] + b[8:12] + a[22:24] + b[12:16] + a[24:28] + b[16:20]
        res += [("B", b[20:28])]
    out2 = []
    carry = []
    for x in res:
        if isinstance(x, tuple):
            carry = x[1]
            stage = 0
            continue
        out2.append(x)
        if carry:
            stage += 1
            if stage == 2:
                out2 += carry[0:2]
            elif stage == 4:
                out2 += carry[2:4]
            elif stage == 6:
                out2 += carry[4:8]
                carry = []
    if carry:
        out2 += carry
    return out2


def task_x(slab, db, exoff=0, axw=AXW):
    out = []
    for n in range(2):
        src = (A1 if slab & 1 else A0) + 16 * db + 8 * n
        for i in range(8):
            out.append(valu("v_mul_f32", v(src + i), v(RL + n), v(src + i)))
        for i in range(4):
            out.append(valu("v_cvt_pk_bf16_f32", v(T + 4 * n + i), v(src + 2 * i), v(src + 2 * i + 1)))
        out.append(ds_write("ds_write_b128", v(axw + n), ("v", T + 4 * n, 4), exoff))
    return out


class Task:
    def __init__(self, name, ins, earliest, deadline):
        self.name, self.ins, self.earliest, self.deadline = name, list(ins), earliest, deadline


def slots_of(i):
    return 2 if i.k in ("trans", "swap", "dma", "vst", "vld", "dsw") else 1


def indep(a, b):
    return not (a.d & (b.u | b.d) or a.u & b.d)


def make_steps():
    S = []
    for s in range(14):
        S.append(step_q(0, s))
    S.append(step_k(0, 0))
    S.append(step_q(1, 0))
    S.append(step_k(0, 1))
    S.append(step_k(0, 2))
    for j in range(3, 16):
        S.append(step_k(0, j))
        S.append(step_q(1, j - 2))
    for it in range(2):
        for blk in range(4):
            S.append(step_v(it, 0, blk))
        for slab in range(1, 4):
            for blk in range(4):
                S.append(step_v(it, slab, blk))
                S.append(step_o(it, slab - 1, blk))
        if it == 0:
            for j in range(3):
                S.append(step_k(1, j))
                S.append(step_o(0, 3, j))
            for j in range(3, 16):
                S.append(step_k(1, j))
            S.append(step_o(0, 3, 3))
        else:
            for o in range(4):
                S.append(step_o(1, 3, o, exoff=8192 * (o // 2), axr=AK))
    return S


def plan_dma(S, xch):
    allc = []
    for i, st in enumerate(S):
        for c in st.chunks:
            c.cstep = i
            allc.append(c)
    key = {}
    for n, c in enumerate(allc):
        key[c.name] = (c.cstep, n)
    for j, w in enumerate(CFG.get("kpre", [])):
        key[f"k0_{j}"] = (w, j)
    order = sorted(allc, key=lambda c: key[c.name])
    free_at = {sl: -1 for sl in range(NSLOT)}
    for c in range(4):
        xch[c].slot = c
        free_at[c] = 0
    pos = 0
    win = {k: [] for k in range(-1, len(S))}
    maxper = CFG.get("maxper", 3)
    fin = [None]
    for k in range(-1, len(S)):
        n = 0
        if k == len(S) - 6 and fin[0] is None or (k > len(S) - 6 and fin[0] is None):
            fs = [sl for sl in range(NSLOT) if free_at[sl] is not None and free_at[sl] <= k]
            if fs:
                fin[0] = fs[0]
                free_at[fs[0]] = None
            else:
                assert k < len(S) - 5, "no slot for final exchange"
        while pos < len(order) and (k == -1 or n < maxper):
            fs = [sl for sl in range(NSLOT) if free_at[sl] is not None and free_at[sl] <= k]
            if not fs:
                break
            c = order[pos]
            assert c.cstep > k, (c.name, k)
            sl = min(fs, key=lambda s: free_at[s])
            c.slot = sl
            c.istep = k
            free_at[sl] = c.cstep + 2
            win[k].append(c)
            pos += 1
            n += 1
        for c in order[pos:]:
            assert c.cstep > k + 1, ("late", c.name, k)
    assert pos == len(order)
    return win, fin[0]


def gen(cfg=None):
    if cfg:
        CFG.update(cfg)
    fragctr[0] = 0
    octr[0] = 0
    S = make_steps()
    xch = [ch_x(c) for c in range(4)]
    win, fslot = plan_dma(S, xch)
    idx = {st.name: i for i, st in enumerate(S)}
    fin_off = fslot * SLOT - EXCH
    P = []
    emit = P.append

    emit(raw("s_cmp_ge_u32 s2, 256", "salu", {"scc"}))
    emit(raw("s_cbranch_scc1 L_end", "branch"))
    emit(raw("s_load_dwordx16 s[64:79], s[0:1], 0", "smem"))
    emit(raw("s_load_dwordx8 s[80:87], s[0:1], 64", "smem"))
    emit(raw("s_load_dwordx2 s[88:89], s[0:1], 96", "smem"))
    emit(raw("s_getpc_b64 s[40:41]", "salu", {"s40", "s41"}))
    emit(label("L_pc"))
    emit(valu("v_mov_b32", TID, "v0"))
    emit(valu("v_and_b32", LANE, 63, "v0"))
    emit(valu("v_lshrrev_b32", "v1", 6, "v0"))
    emit(salu("s_and_b32", sJ, "s2", 3))
    emit(I(f"v_readfirstlane_b32 {sWV}, v1", "valu", {sWV}, {"v1"}))
    emit(salu("s_lshr_b32", sB, "s2", 3))
    emit(salu("s_bfe_u32", sBR, "s2", 0x10002))
    emit(salu("s_mov_b32", "s42", "L_codeend-L_pc", scc=False))
    emit(salu("s_mov_b32", "s43", 0x20000, scc=False))
    emit(salu("s_lshl_b32", "s3", sB, 12))
    emit(valu("v_lshlrev_b32", "v2", 7, LANE))
    emit(valu("v_cmp_gt_u32", "vcc", 32, LANE))
    emit(valu("v_mov_b32", "v3", 0x7ffffff0))
    emit(valu("v_cndmask_b32", "v2", "v3", "v2", "vcc"))
    emit(salu("s_mul_i32", sM0W, sWV, 4 * PS, scc=False))
    emit(salu("s_lshl_b32", sGK, sWV, 14))
    emit(salu("s_lshl_b32", sGQ, sWV, 16))
    emit(salu("s_mul_i32", sGO, sWV, 3584, scc=False))
    emit(raw(f"s_cmp_lg_u32 {sWV}, 0", "salu", {"scc"}, {sWV}))
    emit(raw("s_cbranch_scc1 L_nocw", "branch"))
    emit(I(f"buffer_load_dword {DUMMY}, v2, s[40:43], s3 offen", "cond", (), {"v2", "s3", "s40", "s41", "s42", "s43"}))
    emit(label("L_nocw"))
    emit(valu("v_lshlrev_b32", VL, 4, LANE))
    emit(valu("v_cmp_gt_u32", "vcc", 56, LANE))
    emit(valu("v_lshrrev_b32", "v4", 3, LANE))
    emit(valu("v_and_b32", "v5", 7, LANE))
    emit(valu("v_cndmask_b32", VO, "v3", VL, "vcc"))
    emit(valu("v_lshlrev_b32", VV, 9, "v4"))
    emit(valu("v_lshl_add_u32", VV, "v5", 4, VV))
    emit(salu("s_mul_i32", "s4", sWV, 28, scc=False))
    emit(valu("v_add_u32", "v6", "s4", LANE))
    emit(salu("s_mul_i32", "s5", sB, 14, scc=False))
    emit(valu("v_lshrrev_b32", "v7", 3, "v6"))
    emit(valu("v_add_u32", "v7", "s5", "v7"))
    emit(valu("v_lshlrev_b32", "v7", 13, "v7"))
    emit(valu("v_and_b32", "v8", 7, "v6"))
    emit(valu("v_lshl_add_u32", "v7", "v8", 7, "v7"))
    emit(salu("s_mul_i32", "s5", sB, 112, scc=False))
    emit(valu("v_add_u32", "v8", "s5", "v6"))
    emit(valu("v_lshlrev_b32", "v8", 7, "v8"))
    emit(valu("v_cmp_gt_u32", "vcc", 28, LANE))
    emit(valu("v_cndmask_b32", TQ, "v3", "v7", "vcc"))
    emit(valu("v_cndmask_b32", TO, "v3", "v8", "vcc"))
    emit(wait(lg=0))
    emit(raw(f"s_cmp_eq_u32 {sBR}, 0", "salu", {"scc"}, {sBR}))
    for k in range(10):
        emit(salu("s_cselect_b32", f"s{64+k}", f"s{64+k}", f"s{74+k}", scc=False, uses_scc=True))
    emit(salu("s_mul_i32", "s4", sB, 57344, scc=False))
    emit(salu("s_add_u32", f"s{SX}", "s64", "s4"))
    emit(salu("s_addc_u32", f"s{SX+1}", "s65", 0, uses_scc=True))
    emit(salu("s_sub_u32", f"s{SX}", f"s{SX}", 480))
    emit(salu("s_subb_u32", f"s{SX+1}", f"s{SX+1}", 0, uses_scc=True))
    emit(salu("s_mov_b32", f"s{SX+2}", 57344 + 480, scc=False))
    emit(salu("s_mov_b32", f"s{SX+3}", 0x20000, scc=False))
    emit(salu("s_lshl_b32", "s4", sJ, 11))
    emit(salu("s_add_u32", f"s{SQ}", "s70", "s4"))
    emit(salu("s_addc_u32", f"s{SQ+1}", "s71", 0, uses_scc=True))
    emit(salu("s_sub_u32", f"s{SQ+2}", 448 * 8192, "s4"))
    emit(salu("s_mov_b32", f"s{SQ+3}", 0x20000, scc=False))
    emit(vload("buffer_load_dword", DUMMY, TQ, SQ, 0, 0, CFG["wflags"], track=False))
    for c in xch:
        for s_, d_ in c.pieces():
            for x in s_:
                emit(x)
            emit(d_)
    for c in win[-1]:
        for s_, d_ in c.pieces():
            for x in s_:
                emit(x)
            emit(d_)
    emit(salu("s_lshl_b32", "s4", sB, 3))
    emit(salu("s_lshl_b32", "s5", sJ, 1))
    emit(salu("s_add_u32", "s4", "s4", "s5"))
    emit(salu("s_lshl_b32", "s4", "s4", 18))
    for srd, p in ((SK, 66), (SV, 68)):
        emit(salu("s_add_u32", f"s{srd}", f"s{p}", "s4"))
        emit(salu("s_addc_u32", f"s{srd+1}", f"s{p+1}", 0, uses_scc=True))
        emit(salu("s_mov_b32", f"s{srd+2}", 524288, scc=False))
        emit(salu("s_mov_b32", f"s{srd+3}", 0x20000, scc=False))
    emit(salu("s_mul_i32", "s4", sJ, 1024 * 896, scc=False))
    emit(salu("s_add_u32", f"s{SO}", "s72", "s4"))
    emit(salu("s_addc_u32", f"s{SO+1}", "s73", 0, uses_scc=True))
    emit(salu("s_sub_u32", f"s{SO}", f"s{SO}", 480))
    emit(salu("s_subb_u32", f"s{SO+1}", f"s{SO+1}", 0, uses_scc=True))
    emit(salu("s_mov_b32", f"s{SO+2}", 1024 * 896 + 480, scc=False))
    emit(salu("s_mov_b32", f"s{SO+3}", 0x20000, scc=False))
    emit(salu("s_mov_b32", f"s{SW}", "s88", scc=False))
    emit(salu("s_mov_b32", f"s{SW+1}", "s89", scc=False))
    emit(salu("s_mov_b32", f"s{SW+2}", 256 * 12 * 7168, scc=False))
    emit(salu("s_mov_b32", f"s{SW+3}", 0x20000, scc=False))
    emit(salu("s_mov_b32", f"s{SOUT}", "s84", scc=False))
    emit(salu("s_mov_b32", f"s{SOUT+1}", "s85", scc=False))
    emit(salu("s_mov_b32", f"s{SOUT+2}", 2048 * 1792, scc=False))
    emit(salu("s_mov_b32", f"s{SOUT+3}", 0x20000, scc=False))
    emit(salu("s_mov_b32", f"s{SDBG}", "s86", scc=False))
    emit(salu("s_mov_b32", f"s{SDBG+1}", "s87", scc=False))
    emit(salu("s_mov_b32", f"s{SDBG+2}", 256, scc=False))
    emit(salu("s_mov_b32", f"s{SDBG+3}", 0x20000, scc=False))
    emit(salu("s_mov_b32", sC, f32hex(CSCALE), scc=False))
    emit(salu("s_mov_b32", sT2, f32hex(CFG.get("T2", 2.0 ** 20)), scc=False))
    emit(salu("s_and_b32", "s4", "s2", 0xfc))
    for p in range(1, 4):
        emit(salu("s_xor_b32", "s5", sJ, p))
        emit(salu("s_add_u32", "s5", "s5", "s4"))
        emit(salu("s_mul_i32", "s5", "s5", 12, scc=False))
        emit(salu("s_add_u32", "s5", "s5", sWV))
        emit(salu("s_add_u32", "s5", "s5", 4 * (p - 1)))
        emit(salu("s_mul_i32", f"s{sP+2*(p-1)}", "s5", 7168, scc=False))
        emit(salu("s_add_u32", f"s{sP+2*(p-1)+1}", f"s{sP+2*(p-1)}", 4096))
    for p in range(1, 4):
        emit(salu("s_mul_i32", "s5", "s2", 12, scc=False))
        emit(salu("s_add_u32", "s5", "s5", sWV))
        emit(salu("s_add_u32", "s5", "s5", 4 * (p - 1)))
        emit(salu("s_mul_i32", f"s{sG+2*(p-1)}", "s5", 7168, scc=False))
        emit(salu("s_add_u32", f"s{sG+2*(p-1)+1}", f"s{sG+2*(p-1)}", 4096))
    emit(valu("v_and_b32", "v4", 15, LANE))
    emit(valu("v_mul_u32_u24", "v4", PS, "v4"))
    emit(valu("v_lshrrev_b32", "v5", 4, LANE))
    emit(valu("v_lshl_add_u32", v(AK), "v5", 4, "v4"))
    emit(valu("v_lshrrev_b32", "v4", 2, LANE))
    emit(valu("v_mul_u32_u24", "v4", PS, "v4"))
    emit(valu("v_and_b32", "v5", 3, LANE))
    emit(valu("v_lshl_add_u32", v(AV), "v5", 3, "v4"))
    emit(salu("s_lshr_b32", "s4", sWV, 1))
    emit(salu("s_lshl_b32", "s5", "s4", 9))
    emit(valu("v_add_u32", v(AQ), "s5", v(AV)))
    emit(salu("s_mul_i32", "s5", sWV, 224, scc=False))
    emit(valu("v_add_u32", v(AO), "s5", v(AV)))
    for pat in (AK, AV, AQ, AO):
        for w in (1, 2):
            emit(valu("v_add_u32", v(pat + w), 3 * SLOT * w, v(pat)))
    emit(valu("v_add_u32", v(AXR), EXCH, VL))
    emit(salu("s_and_b32", "s5", sWV, 1))
    for n in range(2):
        emit(salu("s_lshl_b32", "s6", "s5", 1))
        emit(salu("s_add_u32", "s6", "s6", n))
        emit(salu("s_xor_b32", "s6", "s6", sJ))
        emit(salu("s_lshl_b32", "s7", "s4", 2))
        emit(salu("s_add_u32", "s6", "s6", "s7"))
        emit(salu("s_lshl_b32", "s6", "s6", 10))
        emit(valu("v_add_u32", v(AXW + n), "s6", v(AXR)))
    emit(salu("s_mul_i32", "s5", "s5", 2 * SLOT, scc=False))
    emit(valu("v_add_u32", v(T), "s5", v(AK)))
    emit(I("VMWAIT", "vmwait", meta={"chunks": [c.name for c in xch], "lg": None}))
    emit(raw("s_barrier", "barrier"))
    for s in range(14):
        for n in range(2):
            emit(ds_read("ds_read_b128", ("v", xreg(n, s), 4), v(T), n * SLOT + s * 64))
    emit(I("VMWAIT", "vmwait", meta={"chunks": [c.name for c in S[0].chunks], "lg": 0}))
    emit(raw("s_barrier", "barrier"))

    for st in S:
        st.build()
    start = [0]
    for st in S:
        start.append(start[-1] + len(st.mf))
    NM = start[-1]
    Ld = CFG["L"]
    bar = {i: start[i] - Ld for i in range(1, len(S))}
    bargap = {g: i for i, g in bar.items()}
    M = [m for st in S for m in st.mf]
    DS = []
    fr_lu = {}
    for i, st in enumerate(S):
        for d, u, f in st.ds:
            DS.append([d, start[i] + u, f, i])
            if f is not None:
                fr_lu[f.idx] = start[i] + f.lu
    newfrag = set(u for d, u, f, i in DS)

    def E_(name):
        return start[idx[name] + 1] - 1

    def S_(name):
        return start[idx[name]]

    tasks = []
    checks = {}
    for it in range(2):
        if it == 0:
            tasks.append(Task("qfin0", task_qfin(), E_("Q0_13") + 0, S_("K0_0") - 1))
        tasks.append(Task(f"fmax{it}", task_firstmax(), E_(f"K{it}_0") + 3, S_(f"K{it}_1") - 1))
        for j in range(16):
            if j < 15:
                end = E_(f"K{it}_{j+1}")
                cv0 = S_(f"K{it}_{j+1}")
            else:
                end = S_(f"V{it}_0_0") - 1
                cv0 = end if it == 0 else E_(f"K{it}_15") + 3
            tasks.append(Task(f"exp{it}_{j}", task_exp(j), E_(f"K{it}_{j}") + 3, end))
            tasks.append(Task(f"cvt{it}_{j}", task_cvt(j) + task_chk(), max(cv0, E_(f"K{it}_{j}") + 3), end))
            checks[end] = (it, j)
            tasks.append(Task(f"lup{it}_{j}", [valu("v_add_f32", v(L_ + n), v(L_ + n), v(C_ + n)) for n in range(2)], end + 0.5, end + 3))
        tasks.append(Task(f"sfin{it}", task_sfin(), S_(f"V{it}_0_0"), S_(f"V{it}_1_0") - 1))
        if it == 0:
            tasks.append(Task("qfin1", task_qfin(), S_("V0_0_0"), S_("V0_1_0") - 1))
        for slab in range(4):
            for db in range(2):
                oname = f"O{it}_{slab}_{2*db}"
                dl = bar[idx[oname]] - 1
                if it == 1 and slab == 3:
                    if db == 0:
                        a = [valu("v_add_u32", v(AK), fin_off & 0xffffffff, v(AXR))] + [valu("v_add_u32", v(AK + 1 + n), fin_off & 0xffffffff, v(AXW + n)) for n in range(2)]
                        tasks.append(Task("finadr", a, S_("V1_0_0"), S_("V1_1_0")))
                    tasks.append(Task(f"x{it}_{slab}_{db}", task_x(slab, db, 8192 * db, AK + 1), E_("V1_3_3") + 3, bar[idx["O1_3_0"]] - 1))
                    continue
                e0 = max(E_(f"V{it}_{slab}_3") + 3, bar[idx[oname] - 1] + 0.5)
                tasks.append(Task(f"x{it}_{slab}_{db}", task_x(slab, db), e0, dl))
    tasks.sort(key=lambda t: t.earliest)
    extra = {}
    extra[CFG.get("tq1", "Q0_2")] = [([], vload("buffer_load_dword", DUMMY, TQ, SQ, 0, 1024, CFG["wflags"], track=False))]
    extra[CFG.get("to0", "K0_4")] = [([salu("s_mov_b32", sOFF, 480, scc=False)], vload("buffer_load_dword", DUMMY, TO, SO, sOFF, 0, CFG["wflags"], track=False))]
    extra[CFG.get("to1", "K1_0")] = [([salu("s_mov_b32", sOFF, 480 + 512 * 896, scc=False)], vload("buffer_load_dword", DUMMY, TO, SO, sOFF, 0, CFG["wflags"], track=False))]
    DQ = []
    for k in range(len(S)):
        pcs = list(extra.get(S[k].name, []))
        for c in win[k]:
            pcs += c.pieces()
        g0 = bar[k] + 1 if k > 0 else 0
        g1 = bar[k + 1] if k + 1 < len(S) else NM - 1
        for n, (s_, d_) in enumerate(pcs):
            due = g0 + (n * (g1 - g0)) // max(len(pcs), 1)
            DQ.append([list(s_), d_, due, g0, g1])
    dqi = 0
    dsi = 0
    while dsi < len(DS) and DS[dsi][1] - Ld < 0:
        emit(DS[dsi][0])
        dsi += 1
    active = []
    ti = 0
    prev_ds = 0
    stats = dict(over=0, flush={})

    def pick(size, g):
        seen = []
        for t in active:
            for k, ins in enumerate(t.ins[:6]):
                if slots_of(ins) <= size and all(indep(ins, b) for b in seen):
                    if all(need_states(p, ins) <= d for d, p in enumerate(reversed(P[-3:]))):
                        return t.ins.pop(k)
                seen.append(ins)
            seen += t.ins[6:]
            if len(seen) > 40:
                break
        return None

    stop = CFG.get("stop")
    for g in range(NM):
        if stop and g == S_(stop):
            break
        emit(M[g])
        while ti < len(tasks) and tasks[ti].earliest <= g:
            active.append(tasks[ti])
            ti += 1
        slots = 2
        sslot = (g + 1) not in newfrag
        lastdl = max([k for k, t in enumerate(active) if t.deadline <= g], default=-1)
        if g in bargap or g in checks:
            pass
        if lastdl >= 0:
            for t in active[:lastdl + 1]:
                if t.ins:
                    n = sum(slots_of(x) for x in t.ins)
                    stats["over"] += n
                    stats["flush"][t.name] = n
                for x in t.ins:
                    emit(x)
                t.ins = []
            slots = 0
        if g in checks:
            it, j = checks[g]
            emit(raw(f"s_cbranch_vccnz L_rare_{it}_{j}", "branch", (), {"vcc"}))
            emit(label(f"L_back_{it}_{j}"))
        if g in bargap:
            i = bargap[g]
            while dqi < len(DQ) and DQ[dqi][4] <= g:
                for x in DQ[dqi][0]:
                    emit(x)
                emit(DQ[dqi][1])
                stats["over"] += 2
                dqi += 1
            emit(I("VMWAIT", "vmwait", meta={"chunks": [c.name for c in S[i].chunks], "lg": "dsw"}))
            emit(raw("s_barrier", "barrier"))
            sslot = False
        want_dma = dqi < len(DQ) and DQ[dqi][2] <= g and not DQ[dqi][0]
        if sslot and dqi < len(DQ) and DQ[dqi][0] and DQ[dqi][3] <= g + 1:
            emit(DQ[dqi][0].pop(0))
            sslot = False
        nds = 0
        cap = 2 if prev_ds < 2 else 1
        while dsi < len(DS) and nds < cap:
            d, u, f, i = DS[dsi]
            if i > 0 and g < bar[i]:
                break
            if f is not None and f.idx >= NFR and fr_lu[f.idx - NFR] > g:
                break
            due = u - Ld
            if nds == 1 and f is not None and DS[dsi - 1][2] is f:
                pass
            elif due > g:
                break
            elif prev_ds == 2 and due > g - 2:
                break
            emit(d)
            dsi += 1
            nds += 1
        prev_ds = nds
        slots -= nds
        if slots == 2 and want_dma:
            emit(DQ[dqi][1])
            dqi += 1
            slots = 0
        while slots > 0:
            x = pick(slots, g)
            if x is None:
                break
            emit(x)
            slots -= slots_of(x)
        active = [t for t in active if t.ins]
    if stop:
        emit(wait(vm=0, lg=0))
        emit(raw("s_barrier", "barrier"))
        emit(nop(15))
        dump = CFG["dump"]
        emit(salu("s_lshl_b32", "s4", "s2", 2))
        emit(salu("s_add_u32", "s4", "s4", sWV))
        emit(salu("s_mul_i32", "s4", "s4", 1024 * len(dump), scc=False))
        emit(salu("s_mov_b32", f"s{SW+2}", 0x10000000, scc=False))
        for k, (p_, r_) in enumerate(dump):
            emit(vstore("buffer_store_dwordx4", (p_, r_, 4), VL, SW, "s4"))
            emit(salu("s_add_u32", "s4", "s4", 1024))
        emit(wait(vm=0))
        emit(raw("s_branch L_end", "branch"))
    for Tt in range(7):
        for p in range(1, 4):
            emit(vstore("buffer_store_dwordx4", ("a", outacc(Tt, p), 4), VL, SW, f"s{sP+2*(p-1)+Tt//4}", (Tt % 4) * 1024, "sc1"))
    emit(valu("v_and_b32", "v100", 15, LANE))
    emit(salu("s_lshl_b32", "s4", sB, 6))
    emit(salu("s_lshl_b32", "s5", sJ, 4))
    emit(salu("s_add_u32", "s4", "s4", "s5"))
    emit(valu("v_add_u32", "v100", "s4", "v100"))
    emit(valu("v_mul_u32_u24", "v100", 1792, "v100"))
    emit(salu("s_mul_i32", "s4", sBR, 896, scc=False))
    emit(salu("s_mul_i32", "s5", sWV, 224, scc=False))
    emit(salu("s_add_u32", "s4", "s4", "s5"))
    emit(valu("v_add_u32", "v100", "s4", "v100"))
    emit(valu("v_lshrrev_b32", "v102", 4, LANE))
    emit(valu("v_lshl_add_u32", "v101", "v102", 3, "v100"))
    emit(valu("v_lshl_add_u32", "v100", "v102", 4, "v100"))
    for Tt in range(7):
        for i in range(4):
            emit(valu("v_accvgpr_read_b32", v(A0 + 4 * Tt + i), f"a{outacc(Tt, 0)+i}"))
    emit(valu("v_cmp_eq_u32", "vcc", 0, LANE))
    emit(valu("v_mov_b32", "v103", 0x7ffffff0))
    emit(valu("v_mov_b32", "v104", "s2"))
    emit(valu("v_cndmask_b32", "v104", "v103", "v104", "vcc"))
    emit(valu("v_mov_b32", "v105", 1))
    emit(salu("s_and_b32", "s4", "s2", 0xfc))
    emit(valu("v_mov_b32", "v106", "s4"))
    emit(wait(vm=0))
    emit(raw("s_barrier", "barrier"))
    emit(raw(f"s_cmp_lg_u32 {sWV}, 0", "salu", {"scc"}, {sWV}))
    emit(raw("s_cbranch_scc1 L_noflag", "branch"))
    emit(I(f"buffer_store_byte v105, v104, s[{SDBG}:{SDBG+3}], 0 offen sc1", "cond", (), {"v105", "v104"}))
    emit(label("L_noflag"))
    emit(salu("s_mov_b32", "s6", 0x100000, scc=False))
    emit(label("L_poll"))
    emit(I(f"buffer_load_dword v107, v106, s[{SDBG}:{SDBG+3}], 0 offen sc1", "cond", {"v107"}, {"v106"}))
    emit(wait(vm=0))
    emit(I("v_readfirstlane_b32 s5, v107", "valu", {"s5"}, {"v107"}))
    emit(salu("s_sub_u32", "s6", "s6", 1))
    emit(raw("s_cbranch_scc1 L_go", "branch"))
    emit(raw("s_cmp_lg_u32 s5, 0x01010101", "salu", {"scc"}, {"s5"}))
    emit(raw("s_cbranch_scc1 L_poll", "branch"))
    emit(label("L_go"))
    for Tt in range(7):
        for p in range(1, 4):
            emit(vload("buffer_load_dwordx4", ("v", 12 * Tt + 4 * (p - 1), 4), VL, SW, f"s{sG+2*(p-1)+Tt//4}", (Tt % 4) * 1024, "sc1"))
    for Tt in range(7):
        emit(wait(vm=3 * (6 - Tt) + (Tt // 2 if Tt < 6 else 3)))
        for p in range(3):
            for i in range(4):
                emit(valu("v_add_f32", v(A0 + 4 * Tt + i), v(A0 + 4 * Tt + i), v(12 * Tt + 4 * p + i)))
        d = E + 2 * Tt
        for i in range(2):
            emit(valu("v_cvt_pk_bf16_f32", v(d + i), v(A0 + 4 * Tt + 2 * i), v(A0 + 4 * Tt + 2 * i + 1)))
        if Tt % 2 == 1:
            b = d - 2
            emit(swap("v_permlane32_swap_b32", v(b), v(b + 2)))
            emit(swap("v_permlane32_swap_b32", v(b + 1), v(b + 3)))
            emit(swap("v_permlane16_swap_b32", v(b), v(b + 2)))
            emit(swap("v_permlane16_swap_b32", v(b + 1), v(b + 3)))
            emit(vstore("buffer_store_dwordx4", ("v", b, 4), "v100", SOUT, 0, (Tt - 1) * 32))
    emit(vstore("buffer_store_dwordx2", ("v", E + 12, 2), "v101", SOUT, 0, 192))
    emit(label("L_end"))
    emit(raw("s_endpgm", "branch"))
    main = P

    Rr = []
    r1, rt, F0 = "v251", "v253", 254
    for it in range(2):
        for j in range(16):
            if stop and f"L_back_{it}_{j}:" not in {x.t for x in main}:
                continue
            Rr.append(label(f"L_rare_{it}_{j}"))
            Rr.append(nop(9))
            Rr.append(raw(f"s_call_b64 s[{sRET}:{sRET+1}], L_rh_{2 if j == 15 else (j & 1)}", "branch"))
            Rr.append(raw(f"s_call_b64 s[{sRET}:{sRET+1}], L_pr_{j}", "branch"))
            Rr += task_cvt(j)
            Rr.append(nop(1))
            Rr.append(raw(f"s_branch L_back_{it}_{j}", "branch"))
    for var in range(3):
        cur = sbuf(1 if var else 0)
        nxt = None if var == 2 else sbuf(0 if var else 1)
        Rr.append(label(f"L_rh_{var}"))
        for n in range(2):
            r = cur + 8 * n
            Rr += max8(r1, r) + xlane("v_max_f32", r1, rt)
            Rr.append(valu("v_ceil_f32", r1, r1))
            Rr.append(valu("v_max_f32", r1, 0, r1))
            for i in range(4):
                Rr.append(valu("v_sub_f32", v(NEGM + 4 * n + i), v(NEGM + 4 * n + i), r1))
            for i in range(8):
                Rr.append(valu("v_sub_f32", v(r + i), v(r + i), r1))
                if nxt is not None:
                    Rr.append(valu("v_sub_f32", v(nxt + 8 * n + i), v(nxt + 8 * n + i), r1))
            Rr.append(valu("v_sub_f32", rt, 0, r1))
            Rr.append(trans("v_exp_f32", v(F0 + n), rt))
            Rr.append(valu("v_mul_f32", v(L_ + n), v(L_ + n), v(F0 + n)))
        Rr += task_exp(1 if var else 0)
        Rr.append(nop(1))
        Rr.append(raw(f"s_setpc_b64 s[{sRET}:{sRET+1}]", "branch"))
    for k in range(15, 0, -1):
        Rr.append(label(f"L_pr_{k}"))
        for n in range(2):
            for i in range(4):
                pr = v(preg(k - 1, n) + i)
                Rr.append(valu("v_lshlrev_b32", r1, 16, pr))
                Rr.append(valu("v_and_b32", rt, 0xffff0000, pr))
                Rr.append(valu("v_mul_f32", r1, r1, v(F0 + n)))
                Rr.append(valu("v_mul_f32", rt, rt, v(F0 + n)))
                Rr.append(valu("v_cvt_pk_bf16_f32", pr, r1, rt))
    Rr.append(label("L_pr_0"))
    Rr.append(nop(1))
    Rr.append(raw(f"s_setpc_b64 s[{sRET}:{sRET+1}]", "branch"))

    res = []
    nvm = 0
    lastp = {}
    nds = 0
    lastw = None
    for ins in main:
        if ins.k == "vmwait":
            need = max(lastp[c] for c in ins.meta["chunks"])
            vm = min(63, nvm - need - 1)
            lg = ins.meta["lg"]
            if lg == "dsw":
                lg = None if lastw is None else min(15, nds - lastw - 1)
                lastw = None
            res.append(wait(vm=vm, lg=lg))
            continue
        if ins.k in VMEMK:
            if ins.meta.get("chunk"):
                lastp[ins.meta["chunk"]] = nvm
            nvm += 1
        if ins.k in ("dsr", "dsw"):
            if ins.k == "dsw":
                lastw = nds
            nds += 1
        res.append(ins)
    res, nw = insert_lgkm(res)
    log = []
    res, nn = pad_hazards(res, log)
    Rr, _ = pad_hazards(Rr)
    stats.update(waits=nw, nops=nn, noplog=log, n=len(res), nr=len(Rr))
    out = []
    out.append(HEADER)
    out.append(f"; @launch grid=(256,1,1) block=(256,1,1) lds={LDS_BYTES}")
    out.append('.amdgcn_target "amdgcn-amd-amdhsa--gfx950"')
    out += [".text", f".globl {NAME}", ".p2align 8", f".type {NAME},@function", f"{NAME}:"]
    out += [x.t for x in res]
    out.append("L_codeend:")
    out += [x.t for x in Rr]
    out += ['.section .rodata,"a"', ".p2align 6", f".amdhsa_kernel {NAME}", "  .amdhsa_next_free_vgpr 512",
            "  .amdhsa_next_free_sgpr 102", "  .amdhsa_accum_offset 256", "  .amdhsa_group_segment_fixed_size 0",
            "  .amdhsa_kernarg_size 104", "  .amdhsa_user_sgpr_count 2", "  .amdhsa_user_sgpr_kernarg_segment_ptr 1",
            "  .amdhsa_system_sgpr_workgroup_id_x 1", ".end_amdhsa_kernel"]
    return "\n".join(out) + "\n", stats, S, win


HEADER = """; Fused GQA attention block x2 (Q-proj, QK^T, softmax, PV, O-proj, cross-workgroup head reduction).
; kernarg: A_x A_k A_v A_wq A_wo B_x B_k B_v B_wq B_wo out debug ws (8 bytes each)"""

if __name__ == "__main__":
    import json
    cfg = json.loads(sys.argv[2]) if len(sys.argv) > 2 else {}
    txt, stats, S, win = gen(cfg)
    open(sys.argv[1], "w").write(txt)
    print("instrs", stats["n"], "rare", stats["nr"], "waits", stats["waits"], "nops", stats["nops"], "overflow slots", stats["over"], "bytes", len(txt))
    print("flush:", stats["flush"])
    print("noplog:", stats["noplog"][:40])
    if cfg.get("showplan"):
        for k in range(-1, len(S)):
            print(k, S[k].name if k >= 0 else "pro", [(c.name, c.slot, c.cstep - k) for c in win[k]])
```

```python
import sys, math
from asmlib import *

NAME = "concat_heads__gqa_block_cached__gqa_block_cached__near_ridge_kernel"

PS = 1056
SLOT = 16 * PS
NSLOT = 9
EXCH = NSLOT * SLOT
LDS_BYTES = 163840

PX = 0
A0, A1 = 128, 160
E = 192
NEGM = 208
L_, C_, RL = 216, 218, 220
AK, AV, AQ, AO = 222, 225, 228, 231
AXW = 234
AXR = 236
VL, VV, VO = "v237", "v238", "v239"
T = 240
TQ, TO = "v248", "v249"
DUMMY = "v250"
TID = "v251"
LANE = "v252"
QB = 0
FR, NFR = 64, 8
BF = 96
QA = 128
OUT = 128
SK, SV, SQ, SO, SX, SW, SOUT, SDBG, SCODE = 8, 12, 16, 20, 24, 28, 32, 36, 40
sM0W, sGK, sGQ, sGO = "s44", "s45", "s46", "s47"
sOFF = "s48"
sC, sT2 = "s49", "s50"
sWV, sJ, sB, sBR = "s51", "s52", "s53", "s54"
sRET = 56
sP = 8
sG = 14
sGKi = ("s58", "s59")
sGQi = ("s60", "s61")
sOI = ("s62", "s63")
sOT = 64
sR128 = "s68"
sVB, sOB = "s69", "s55"

CSCALE = math.log2(math.e) / 16.0


def f32hex(x):
    import struct
    return "0x%08x" % struct.unpack("<I", struct.pack("<f", x))[0]


class Chunk:
    def __init__(self, name, typ, srd, voff, gbase, const, G, flags, hbm):
        self.name, self.typ, self.srd, self.voff, self.gbase, self.const, self.G = name, typ, srd, voff, gbase, const, G
        self.flags, self.hbm = flags, hbm
        self.slot = None
        self.cstep = None
        self.istep = None
        self.rel = 2
        self.pre = []
        self.grp = None

    def pieces(self):
        out = []
        for j in range(4):
            s = list(self.pre) if j == 0 else []
            if j == 0:
                s.append(salu("s_add_u32", "m0", sM0W, self.slot * SLOT))
            s.append(salu("s_add_u32", sOFF, self.gbase, self.const + j * (self.G - PS)))
            out.append((s, dma(self.voff, self.srd, sOFF, j * PS, self.flags, chunk=self.name)))
        return out

    def addr(self, pat, off):
        w, r = divmod(self.slot, 3)
        return f"v{pat + w}", r * SLOT + off


def ch_x(c):
    return Chunk(f"x{c}", "x", SX, VO, sGO, 480 + 16 * c * 896, 896, CFG["xflags"], True)


def ch_q(it, s, i):
    return Chunk(f"q{it}_{s}_{i}", "W", SQ, VL, sGQi[it], (32 * s + 4 * i) * 8192, 8192, CFG["wflags"], False)


def ch_k(it, j):
    blk, jj = divmod(j, 4)
    return Chunk(f"k{it}_{j}", "K", SK, VL, sGKi[it], (128 * blk + 2 * jj) * 512, 4096, "nt", True)


def ch_v(it, slab, blk):
    c = Chunk(f"v{it}_{slab}_{blk}", "V", SV, VV, sVB, 128 * blk * 512, 4096, "nt", True)
    if blk == 0:
        c.pre = [salu("s_xor_b32", sVB, sR128, slab * 128), salu("s_add_u32", sVB, sVB, sGKi[it])]
    return c


def ch_o(it, slab, o, i):
    db, hh = divmod(o, 2)
    row = hh * 256 + 32 * db + 16 * i
    c = Chunk(f"o{it}_{slab}_{o}_{i}", "W", SO, VO, sOB, 480 + row * 896, 896, CFG["wflags"], False)
    if o == 0 and i == 0:
        c.pre = [salu("s_add_u32", sOB, f"s{sOT+slab}", sOI[it])]
    return c


class Step:
    def __init__(self, name, chunks):
        self.name = name
        self.chunks = chunks
        self.build = None
        self.mf = []
        self.ds = []


CFG = dict(xflags="", wflags="", L=7, stop=None)

fragctr = [0]


class Frag:
    def __init__(self):
        self.idx = fragctr[0]
        fragctr[0] += 1
        self.reg = FR + 4 * (self.idx % NFR)
        self.last_use = None


def xreg(n, s):
    return PX + 8 * (s + 2) + 4 * n


def preg(j, n):
    return PX + 8 * j + 4 * n


def qacc(Tt, n):
    return QA + 16 * (Tt // 2) + 8 * n + 4 * (Tt & 1)


def qb(s, n):
    return QB + 8 * s + 4 * n


def sbuf(j):
    return A0 + 16 * (j & 1)


def stile(j, t, n):
    return sbuf(j) + 8 * n + 4 * t


def oacc(slab, dt, n):
    return (A1 if slab & 1 else A0) + 16 * (dt // 2) + 8 * n + 4 * (dt & 1)


def outacc(Tt, p):
    return OUT + 16 * Tt + 4 * p


def tr(dst, ch, pat, off):
    a, o = ch.addr(pat, off)
    return ds_read("ds_read_b64_tr_b16", ("a", dst, 2), a, o)


def step_q(it, s):
    A, B = ch_q(it, s, 0), ch_q(it, s, 1)
    st = Step(f"Q{it}_{s}", [A, B])

    def build():
        for Tt in range(16):
            f = Frag()
            u = len(st.mf)
            st.ds.append((tr(f.reg, A, AQ, Tt * 32), u, f))
            st.ds.append((tr(f.reg + 2, B, AQ, Tt * 32), u, f))
            for n in range(2):
                acc = ("a", qacc(Tt, n))
                st.mf.append(mfma(acc, ("a", f.reg), ("v", xreg(n, s)), 0 if s == 0 else acc))
            f.lu = len(st.mf) - 1
    st.build = build
    return st


def step_k(it, j):
    Kc = ch_k(it, j)
    st = Step(f"K{it}_{j}", [Kc])

    def build():
        for t in range(2):
            for s in range(8):
                f = Frag()
                u = len(st.mf)
                a, o = Kc.addr(AK, t * 512 + s * 64)
                st.ds.append((ds_read("ds_read_b128", ("a", f.reg, 4), a, o), u, f))
                for n in range(2):
                    acc = ("v", stile(j, t, n))
                    c = acc if s else (0 if j == 0 else ("v", NEGM + 4 * n))
                    st.mf.append(mfma(acc, ("a", f.reg), ("a", qb(s, n)), c))
                f.lu = len(st.mf) - 1
    st.build = build
    return st


def step_v(it, slab, blk):
    Vc = ch_v(it, slab, blk)
    st = Step(f"V{it}_{slab}_{blk}", [Vc])

    def build():
        for jj in range(4):
            for dt in range(4):
                f = Frag()
                u = len(st.mf)
                st.ds.append((tr(f.reg, Vc, AV, (2 * jj) * 128 + dt * 32), u, f))
                st.ds.append((tr(f.reg + 2, Vc, AV, (2 * jj + 1) * 128 + dt * 32), u, f))
                for n in range(2):
                    acc = ("v", oacc(slab, dt, n))
                    st.mf.append(mfma(acc, ("a", f.reg), ("v", preg(4 * blk + jj, n)), 0 if (blk == 0 and jj == 0) else acc))
                f.lu = len(st.mf) - 1
    st.build = build
    return st


octr = [0]


def step_o(it, slab, o, exoff=0, axr=AXR):
    A, B = ch_o(it, slab, o, 0), ch_o(it, slab, o, 1)
    st = Step(f"O{it}_{slab}_{o}", [A, B])
    hh = o % 2

    def build():
        bf = BF + 16 * (octr[0] & 1)
        first = octr[0] == 0
        octr[0] += 1
        for Tt in range(7):
            f = Frag()
            u = len(st.mf)
            if Tt == 0:
                st.ds.append((ds_read("ds_read_b128", ("a", bf, 4), f"v{axr}", exoff + (hh * 4) * 1024), u, None))
            st.ds.append((tr(f.reg, A, AO, Tt * 32), u, f))
            st.ds.append((tr(f.reg + 2, B, AO, Tt * 32), u, f))
            if Tt == 0:
                for p in range(1, 4):
                    st.ds.append((ds_read("ds_read_b128", ("a", bf + 4 * p, 4), f"v{axr}", exoff + (hh * 4 + p) * 1024), u + p, None))
            for p in range(4):
                acc = ("a", outacc(Tt, p))
                st.mf.append(mfma(acc, ("a", f.reg), ("a", bf + 4 * p), 0 if first else acc))
            f.lu = len(st.mf) - 1
    st.build = build
    return st


def v(n):
    return f"v{n}"


def xlane(op, x, t):
    return [valu("v_mov_b32", t, x), swap("v_permlane32_swap_b32", t, x), valu(op, x, x, t),
            valu("v_mov_b32", t, x), swap("v_permlane16_swap_b32", t, x), valu(op, x, x, t)]


def max8(dst, r):
    return [valu("v_max3_f32", dst, v(r), v(r + 1), v(r + 2)), valu("v_max3_f32", dst, dst, v(r + 3), v(r + 4)),
            valu("v_max3_f32", dst, dst, v(r + 5), v(r + 6)), valu("v_max_f32", dst, dst, v(r + 7))]


def interleave(a, b):
    out = []
    for i in range(max(len(a), len(b))):
        if i < len(a):
            out.append(a[i])
        if i < len(b):
            out.append(b[i])
    return out


def task_firstmax():
    seqs = []
    for n in range(2):
        m, t = v(T + n), v(T + 2 + n)
        r = sbuf(0) + 8 * n
        s = max8(m, r) + xlane("v_max_f32", m, t)
        s.append(valu("v_ceil_f32", m, m))
        for i in range(4):
            s.append(valu("v_sub_f32", v(NEGM + 4 * n + i), 0, m))
        s.append(valu("v_mov_b32", v(L_ + n), 0))
        for i in range(8):
            s.append(valu("v_sub_f32", v(r + i), v(r + i), m))
        seqs.append(s)
    return interleave(*seqs)


def task_exp(j):
    out = []
    for n in range(2):
        r = sbuf(j) + 8 * n
        e = E + 8 * n
        c = v(C_ + n)
        for i in range(8):
            out.append(trans("v_exp_f32", v(e + i), v(r + i)))
            if i == 2:
                out.append(valu("v_add_f32", c, v(e), v(e + 1)))
            elif i > 2:
                out.append(valu("v_add_f32", c, c, v(e + i - 1)))
        out.append(valu("v_add_f32", c, c, v(e + 7)))
    return out


def task_cvt(j):
    out = []
    for n in range(2):
        for i in range(4):
            out.append(valu("v_cvt_pk_bf16_f32", v(preg(j, n) + i), v(E + 8 * n + 2 * i), v(E + 8 * n + 2 * i + 1)))
    return out


def task_chk():
    return [valu("v_max_f32", v(T), v(C_), v(C_ + 1)),
            I(f"v_cmp_lt_f32 vcc, {sT2}, v{T}", "valu", {"vcc"}, {sT2, v(T)})]


def task_sfin():
    seqs = []
    for n in range(2):
        s = xlane("v_add_f32", v(L_ + n), v(T + 2 + n))
        s.append(trans("v_rcp_f32", v(RL + n), v(L_ + n)))
        seqs.append(s)
    return interleave(*seqs)


def task_qfin():
    out = []
    for db in range(8):
        for n in range(2):
            src = QA + 16 * db + 8 * n
            e = E + 8 * n
            t = T + 4 * n
            for i in range(8):
                out.append(valu("v_accvgpr_read_b32", v(e + i), f"a{src+i}"))
            for i in range(8):
                out.append(valu("v_mul_f32", v(e + i), sC, v(e + i)))
            for i in range(4):
                out.append(valu("v_cvt_pk_bf16_f32", v(t + i), v(e + 2 * i), v(e + 2 * i + 1)))
            out.append(swap("v_permlane32_swap_b32", v(t), v(t + 2)))
            out.append(swap("v_permlane32_swap_b32", v(t + 1), v(t + 3)))
            out.append(swap("v_permlane16_swap_b32", v(t), v(t + 2)))
            out.append(swap("v_permlane16_swap_b32", v(t + 1), v(t + 3)))
            for i in range(4):
                out.append(valu("v_accvgpr_write_b32", f"a{qb(db, n)+i}", v(t + i)))
    groups = [out[i * 28:(i + 1) * 28] for i in range(16)]
    res = []
    for g in range(0, 16, 2):
        a, b = groups[g], groups[g + 1]
        res += a[:20] + b[:8] + a[20:22] + b[8:12] + a[22:24] + b[12:16] + a[24:28] + b[16:20]
        res += [("B", b[20:28])]
    out2 = []
    carry = []
    for x in res:
        if isinstance(x, tuple):
            carry = x[1]
            stage = 0
            continue
        out2.append(x)
        if carry:
            stage += 1
            if stage == 2:
                out2 += carry[0:2]
            elif stage == 4:
                out2 += carry[2:4]
            elif stage == 6:
                out2 += carry[4:8]
                carry = []
    if carry:
        out2 += carry
    return out2


def task_x(slab, db, exoff=0, axw=AXW):
    out = []
    for n in range(2):
        src = (A1 if slab & 1 else A0) + 16 * db + 8 * n
        for i in range(8):
            out.append(valu("v_mul_f32", v(src + i), v(RL + n), v(src + i)))
        for i in range(4):
            out.append(valu("v_cvt_pk_bf16_f32", v(T + 4 * n + i), v(src + 2 * i), v(src + 2 * i + 1)))
        if CFG.get("xw") == "none":
            continue
        if CFG.get("xw") == "b64":
            out.append(ds_write("ds_write_b64", v(axw + n), ("v", T + 4 * n, 2), exoff))
            out.append(ds_write("ds_write_b64", v(axw + n), ("v", T + 4 * n + 2, 2), exoff + 8))
            continue
        out.append(ds_write("ds_write_b128", v(axw + n), ("v", T + 4 * n, 4), exoff))
    return out


class Task:
    def __init__(self, name, ins, earliest, deadline):
        self.name, self.ins, self.earliest, self.deadline = name, list(ins), earliest, deadline


def slots_of(i):
    return 2 if i.k in ("trans", "swap", "dma", "vst", "vld", "dsw") else 1


def indep(a, b):
    return not (a.d & (b.u | b.d) or a.u & b.d)


def make_steps():
    S = []
    for s in range(14):
        S.append(step_q(0, s))
    S.append(step_k(0, 0))
    S.append(step_q(1, 0))
    S.append(step_k(0, 1))
    S.append(step_k(0, 2))
    for j in range(3, 16):
        S.append(step_k(0, j))
        S.append(step_q(1, j - 2))
    for it in range(2):
        for blk in range(4):
            S.append(step_v(it, 0, blk))
        for slab in range(1, 4):
            for blk in range(4):
                S.append(step_v(it, slab, blk))
                S.append(step_o(it, slab - 1, blk))
        if it == 0:
            for j in range(3):
                S.append(step_k(1, j))
                S.append(step_o(0, 3, j))
            for j in range(3, 16):
                S.append(step_k(1, j))
            S.append(step_o(0, 3, 3))
        else:
            for o in range(4):
                S.append(step_o(1, 3, o, exoff=8192 * (o // 2), axr=AK))
    return S


def plan_dma(S, xch):
    H, W = [], []
    for i, st in enumerate(S):
        for c in st.chunks:
            c.cstep = i
            (H if c.hbm else W).append(c)
    names = [st.name for st in S]
    free_at = {sl: -1 for sl in range(NSLOT)}
    for c in range(4):
        xch[c].slot = c
        free_at[c] = 0
    win = {k: [] for k in range(-1, len(S))}
    LW, LH = CFG.get("LW", 2), CFG.get("LH", 3)
    MW, MH = CFG.get("MW", 4), CFG.get("MH", 9)
    mode = CFG.get("plan", "fifo")
    pat = CFG.get("pat", [[2, 0], [0, 0], [0, 2], [0, 2]])
    anchors = sorted(names.index(n) + d for n, d in CFG.get("anchors", [["K0_0", 0]]))
    over = {names.index(n) + d: x for n, d, x in CFG.get("over", [])}
    fin = None
    for k in range(-1, len(S)):
        if k >= len(S) - 6 and fin is None:
            fs = [sl for sl in range(NSLOT) if free_at[sl] is not None and free_at[sl] <= k]
            if fs:
                fin = fs[0]
                free_at[fin] = None
            else:
                assert k < len(S) - 5, "no slot for final exchange"

        def take(q):
            fs = [sl for sl in range(NSLOT) if free_at[sl] is not None and free_at[sl] <= k]
            if not fs or not q:
                return False
            c = q.pop(0)
            sl = min(fs, key=lambda s_: free_at[s_])
            c.slot, c.istep = sl, k
            free_at[sl] = c.cstep + c.rel
            win[k].append(c)
            return True
        if k == -1:
            for _ in range(CFG.get("npro", 5)):
                take(W)
            continue
        if mode == "fifo":
            n = 0
            while n < 3 and (H or W):
                q = H if (H and (not W or H[0].cstep <= W[0].cstep)) else W
                if not take(q):
                    break
                n += 1
        else:
            a = [x for x in anchors if x <= k]
            if k in over:
                mH, mW = over[k]
            elif not a:
                mH, mW = 0, 2
            else:
                mH, mW = pat[(k - a[-1]) % len(pat)]
            if k not in over and a and (not W or W[0].cstep > k + MW + 1):
                mH = 2
            nH = nW = 0
            while True:
                uh = H and H[0].cstep <= k + LH and nH < 2
                uw = W and W[0].cstep <= k + LW
                if uw and (not uh or W[0].cstep - LW <= H[0].cstep - LH):
                    if not take(W):
                        break
                    nW += 1
                elif uh:
                    if not take(H):
                        break
                    nH += 1
                else:
                    break
            while nH < mH and H and H[0].cstep <= k + MH and take(H):
                nH += 1
            while nW < mW and W and W[0].cstep <= k + MW and take(W):
                nW += 1
        for q in (H, W):
            assert not q or q[0].cstep > k + 1, ("late", q[0].name, k)
    assert not H and not W
    return win, fin


def gen(cfg=None):
    if cfg:
        CFG.update(cfg)
    fragctr[0] = 0
    octr[0] = 0
    S = make_steps()
    xch = [ch_x(c) for c in range(4)]
    win, fslot = plan_dma(S, xch)
    idx = {st.name: i for i, st in enumerate(S)}
    fin_off = fslot * SLOT - EXCH
    P = []
    emit = P.append

    emit(raw("s_cmp_ge_u32 s2, 256", "salu", {"scc"}))
    emit(raw("s_cbranch_scc1 L_end", "branch"))
    stamps = CFG.get("stamps", [])
    sregs = [90] + list(range(70, 90, 2)) + list(range(92, 102, 2))
    nst = [0]

    def stamp():
        emit(raw(f"{'s_memtime' if CFG.get('cyc') else 's_memrealtime'} s[{sregs[nst[0]]}:{sregs[nst[0]]+1}]", "smem"))
        nst[0] += 1
    if stamps:
        stamp()
    emit(raw("s_load_dwordx16 s[64:79], s[0:1], 0", "smem"))
    emit(raw("s_load_dwordx8 s[80:87], s[0:1], 64", "smem"))
    emit(raw("s_load_dwordx2 s[88:89], s[0:1], 96", "smem"))
    emit(raw("s_getpc_b64 s[40:41]", "salu", {"s40", "s41"}))
    emit(label("L_pc"))
    emit(valu("v_mov_b32", TID, "v0"))
    emit(valu("v_and_b32", LANE, 63, "v0"))
    emit(valu("v_lshrrev_b32", "v1", 6, "v0"))
    emit(salu("s_and_b32", sJ, "s2", 3))
    emit(I(f"v_readfirstlane_b32 {sWV}, v1", "valu", {sWV}, {"v1"}))
    emit(salu("s_lshr_b32", sB, "s2", 3))
    emit(salu("s_bfe_u32", sBR, "s2", 0x10002))
    emit(salu("s_mov_b32", "s42", "L_codeend-L_pc", scc=False))
    emit(salu("s_mov_b32", "s43", 0x20000, scc=False))
    emit(salu("s_lshl_b32", "s3", sB, 12))
    emit(valu("v_lshlrev_b32", "v2", 7, LANE))
    emit(valu("v_cmp_gt_u32", "vcc", 32, LANE))
    emit(valu("v_mov_b32", "v3", 0x7ffffff0))
    emit(valu("v_cndmask_b32", "v2", "v3", "v2", "vcc"))
    emit(salu("s_mul_i32", sM0W, sWV, 4 * PS, scc=False))
    emit(salu("s_lshl_b32", sGK, sWV, 14))
    emit(salu("s_lshl_b32", sGQ, sWV, 16))
    emit(salu("s_mul_i32", sGO, sWV, 3584, scc=False))
    emit(salu("s_and_b32", "s4", sB, 1 if CFG.get("swap", 1) else 0))
    emit(salu("s_xor_b32", "s5", "s4", 1))
    for it_, r_ in ((0, "s4"), (1, "s5")):
        emit(salu("s_lshl_b32", "s6", r_, 10))
        emit(salu("s_add_u32", sGQi[it_], sGQ, "s6"))
        emit(salu("s_lshl_b32", "s6", r_, 18))
        emit(salu("s_add_u32", sGKi[it_], sGK, "s6"))
        emit(salu("s_mul_i32", sOI[it_], r_, 512 * 896, scc=False))
    emit(raw(f"s_cmp_lg_u32 {sWV}, 0", "salu", {"scc"}, {sWV}))
    emit(raw("s_cbranch_scc1 L_nocw", "branch"))
    emit(I(f"buffer_load_dword {DUMMY}, v2, s[40:43], s3 offen", "cond", (), {"v2", "s3", "s40", "s41", "s42", "s43"}))
    emit(label("L_nocw"))
    emit(valu("v_lshlrev_b32", VL, 4, LANE))
    emit(valu("v_cmp_gt_u32", "vcc", 56, LANE))
    emit(valu("v_lshrrev_b32", "v4", 3, LANE))
    emit(valu("v_and_b32", "v5", 7, LANE))
    emit(valu("v_cndmask_b32", VO, "v3", VL, "vcc"))
    emit(valu("v_lshlrev_b32", VV, 9, "v4"))
    emit(valu("v_lshl_add_u32", VV, "v5", 4, VV))
    emit(salu("s_mul_i32", "s4", sWV, 28, scc=False))
    emit(valu("v_add_u32", "v6", "s4", LANE))
    emit(salu("s_mul_i32", "s5", sB, 14, scc=False))
    emit(valu("v_lshrrev_b32", "v7", 3, "v6"))
    emit(valu("v_add_u32", "v7", "s5", "v7"))
    emit(valu("v_lshlrev_b32", "v7", 13, "v7"))
    emit(valu("v_and_b32", "v8", 7, "v6"))
    emit(valu("v_lshl_add_u32", "v7", "v8", 7, "v7"))
    emit(salu("s_mul_i32", "s5", sB, 112, scc=False))
    emit(valu("v_add_u32", "v8", "s5", "v6"))
    emit(valu("v_lshlrev_b32", "v8", 7, "v8"))
    emit(valu("v_cmp_gt_u32", "vcc", 28, LANE))
    emit(valu("v_cndmask_b32", TQ, "v3", "v7", "vcc"))
    emit(valu("v_cndmask_b32", TO, "v3", "v8", "vcc"))
    emit(wait(lg=0))
    if "karg" in stamps:
        sregs.remove(92); sregs.insert(1, 92)
        stamp()
    emit(raw(f"s_cmp_eq_u32 {sBR}, 0", "salu", {"scc"}, {sBR}))
    for k in range(10):
        emit(salu("s_cselect_b32", f"s{64+k}", f"s{64+k}", f"s{74+k}", scc=False, uses_scc=True))
    emit(salu("s_mul_i32", "s4", sB, 57344, scc=False))
    emit(salu("s_add_u32", f"s{SX}", "s64", "s4"))
    emit(salu("s_addc_u32", f"s{SX+1}", "s65", 0, uses_scc=True))
    emit(salu("s_sub_u32", f"s{SX}", f"s{SX}", 480))
    emit(salu("s_subb_u32", f"s{SX+1}", f"s{SX+1}", 0, uses_scc=True))
    emit(salu("s_mov_b32", f"s{SX+2}", 57344 + 480, scc=False))
    emit(salu("s_mov_b32", f"s{SX+3}", 0x20000, scc=False))
    emit(salu("s_lshl_b32", "s4", sJ, 11))
    emit(salu("s_add_u32", f"s{SQ}", "s70", "s4"))
    emit(salu("s_addc_u32", f"s{SQ+1}", "s71", 0, uses_scc=True))
    emit(salu("s_sub_u32", f"s{SQ+2}", 448 * 8192, "s4"))
    emit(salu("s_mov_b32", f"s{SQ+3}", 0x20000, scc=False))
    emit(vload("buffer_load_dword", DUMMY, TQ, SQ, 0, 0, CFG["wflags"], track=False))
    if CFG.get("swap", 1):
        emit(vload("buffer_load_dword", DUMMY, TQ, SQ, 0, 1024, CFG["wflags"], track=False))
    for c in xch:
        for s_, d_ in c.pieces():
            for x in s_:
                emit(x)
            emit(d_)
    for c in win[-1][:2]:
        for s_, d_ in c.pieces():
            for x in s_:
                emit(x)
            emit(d_)
    emit(salu("s_lshl_b32", "s4", sB, 3))
    emit(salu("s_lshl_b32", "s5", sJ, 1))
    emit(salu("s_add_u32", "s4", "s4", "s5"))
    emit(salu("s_lshl_b32", "s4", "s4", 18))
    for srd, p in ((SK, 66), (SV, 68)):
        emit(salu("s_add_u32", f"s{srd}", f"s{p}", "s4"))
        emit(salu("s_addc_u32", f"s{srd+1}", f"s{p+1}", 0, uses_scc=True))
        emit(salu("s_mov_b32", f"s{srd+2}", 524288, scc=False))
        emit(salu("s_mov_b32", f"s{srd+3}", 0x20000, scc=False))
    emit(salu("s_mul_i32", "s4", sJ, 1024 * 896, scc=False))
    emit(salu("s_add_u32", f"s{SO}", "s72", "s4"))
    emit(salu("s_addc_u32", f"s{SO+1}", "s73", 0, uses_scc=True))
    emit(salu("s_sub_u32", f"s{SO}", f"s{SO}", 480))
    emit(salu("s_subb_u32", f"s{SO+1}", f"s{SO+1}", 0, uses_scc=True))
    emit(salu("s_mov_b32", f"s{SO+2}", 1024 * 896 + 480, scc=False))
    emit(salu("s_mov_b32", f"s{SO+3}", 0x20000, scc=False))
    emit(salu("s_mov_b32", f"s{SW}", "s88", scc=False))
    emit(salu("s_mov_b32", f"s{SW+1}", "s89", scc=False))
    emit(salu("s_mov_b32", f"s{SW+2}", 256 * 12 * 7168, scc=False))
    emit(salu("s_mov_b32", f"s{SW+3}", 0x20000, scc=False))
    emit(salu("s_mov_b32", f"s{SOUT}", "s84", scc=False))
    emit(salu("s_mov_b32", f"s{SOUT+1}", "s85", scc=False))
    emit(salu("s_mov_b32", f"s{SOUT+2}", 2048 * 1792, scc=False))
    emit(salu("s_mov_b32", f"s{SOUT+3}", 0x20000, scc=False))
    emit(salu("s_mov_b32", f"s{SDBG}", "s86", scc=False))
    emit(salu("s_mov_b32", f"s{SDBG+1}", "s87", scc=False))
    emit(salu("s_mov_b32", f"s{SDBG+2}", 256, scc=False))
    emit(salu("s_mov_b32", f"s{SDBG+3}", 0x20000, scc=False))
    emit(salu("s_mov_b32", sC, f32hex(CSCALE), scc=False))
    emit(salu("s_mov_b32", sT2, f32hex(CFG.get("T2", 2.0 ** 20)), scc=False))
    emit(salu("s_bfe_u32", "s4", sB, 0x20001 if CFG.get("rot", 1) else 0))
    emit(salu("s_lshl_b32", sR128, "s4", 7))
    for sl in range(4):
        emit(salu("s_xor_b32", "s5", "s4", sl))
        emit(salu("s_mul_i32", "s5", "s5", 64 * 896, scc=False))
        emit(salu("s_add_u32", f"s{sOT+sl}", "s5", sGO))
    emit(valu("v_and_b32", "v4", 15, LANE))
    emit(valu("v_mul_u32_u24", "v4", PS, "v4"))
    emit(valu("v_lshrrev_b32", "v5", 4, LANE))
    emit(valu("v_lshl_add_u32", v(AK), "v5", 4, "v4"))
    emit(valu("v_lshrrev_b32", "v4", 2, LANE))
    emit(valu("v_mul_u32_u24", "v4", PS, "v4"))
    emit(valu("v_and_b32", "v5", 3, LANE))
    emit(valu("v_lshl_add_u32", v(AV), "v5", 3, "v4"))
    emit(salu("s_lshr_b32", "s4", sWV, 1))
    emit(salu("s_lshl_b32", "s5", "s4", 9))
    emit(valu("v_add_u32", v(AQ), "s5", v(AV)))
    emit(salu("s_mul_i32", "s5", sWV, 224, scc=False))
    emit(valu("v_add_u32", v(AO), "s5", v(AV)))
    for pat in (AK, AV, AQ, AO):
        for w in (1, 2):
            emit(valu("v_add_u32", v(pat + w), 3 * SLOT * w, v(pat)))
    emit(valu("v_add_u32", v(AXR), EXCH, VL))
    emit(salu("s_and_b32", "s5", sWV, 1))
    for n in range(2):
        emit(salu("s_lshl_b32", "s6", "s5", 1))
        emit(salu("s_add_u32", "s6", "s6", n))
        emit(salu("s_xor_b32", "s6", "s6", sJ))
        emit(salu("s_lshl_b32", "s7", "s4", 2))
        emit(salu("s_add_u32", "s6", "s6", "s7"))
        emit(salu("s_lshl_b32", "s6", "s6", 10))
        emit(valu("v_add_u32", v(AXW + n), "s6", v(AXR)))
    emit(salu("s_mul_i32", "s5", "s5", 2 * SLOT, scc=False))
    emit(valu("v_add_u32", v(T), "s5", v(AK)))
    if "issued" in stamps:
        stamp()
    emit(I("VMWAIT", "vmwait", meta={"chunks": [c.name for c in xch], "lg": None}))
    emit(raw("s_barrier", "barrier"))
    if "xland" in stamps:
        stamp()
    rest = [p_ for c in win[-1][2:] for p_ in c.pieces()]
    for s in range(14):
        for n in range(2):
            emit(ds_read("ds_read_b128", ("v", xreg(n, s), 4), v(T), n * SLOT + s * 64))
        if s < len(rest):
            for x in rest[s][0]:
                emit(x)
            emit(rest[s][1])
    assert len(rest) <= 14
    if CFG.get("offs"):
        msk, sl = CFG["offs"]
        emit(salu("s_and_b32", "s4", sB, msk))
        emit(label("L_offs"))
        emit(raw("s_cmp_eq_u32 s4, 0", "salu", {"scc"}, {"s4"}))
        emit(raw("s_cbranch_scc1 L_offe", "branch"))
        emit(raw(f"s_sleep {sl}", "salu"))
        emit(salu("s_sub_u32", "s4", "s4", 1))
        emit(raw("s_branch L_offs", "branch"))
        emit(label("L_offe"))
    emit(I("VMWAIT", "vmwait", meta={"chunks": [c.name for c in S[0].chunks], "lg": 0}))
    emit(raw("s_barrier", "barrier"))

    for st in S:
        st.build()
    start = [0]
    for st in S:
        start.append(start[-1] + len(st.mf))
    NM = start[-1]
    Ld = CFG["L"]
    bar = {i: start[i] - Ld for i in range(1, len(S))}
    bargap = {g: i for i, g in bar.items()}
    M = [m for st in S for m in st.mf]
    DS = []
    fr_lu = {}
    for i, st in enumerate(S):
        for d, u, f in st.ds:
            DS.append([d, start[i] + u, f, i])
            if f is not None:
                fr_lu[f.idx] = start[i] + f.lu
    newfrag = set(u for d, u, f, i in DS)

    def E_(name):
        return start[idx[name] + 1] - 1

    def S_(name):
        return start[idx[name]]

    tasks = []
    checks = {}
    for it in range(2):
        if it == 0:
            tasks.append(Task("qfin0", task_qfin(), E_("Q0_13") + 0, S_("K0_0") - 1))
        tasks.append(Task(f"fmax{it}", task_firstmax(), E_(f"K{it}_0") + 3, S_(f"K{it}_1") - 1))
        for j in range(16):
            if j < 15:
                end = E_(f"K{it}_{j+1}")
                cv0 = S_(f"K{it}_{j+1}")
            else:
                end = S_(f"V{it}_0_0") - 1
                cv0 = end if it == 0 else E_(f"K{it}_15") + 3
            tasks.append(Task(f"exp{it}_{j}", task_exp(j), E_(f"K{it}_{j}") + 3, end))
            tasks.append(Task(f"cvt{it}_{j}", task_cvt(j) + task_chk(), max(cv0, E_(f"K{it}_{j}") + 3), end))
            checks[end] = (it, j)
            tasks.append(Task(f"lup{it}_{j}", [valu("v_add_f32", v(L_ + n), v(L_ + n), v(C_ + n)) for n in range(2)], end + 0.5, end + 3))
        tasks.append(Task(f"sfin{it}", task_sfin(), S_(f"V{it}_0_0"), S_(f"V{it}_1_0") - 1))
        if it == 0:
            tasks.append(Task("qfin1", task_qfin(), S_("V0_0_0"), S_("V0_1_0") - 1))
        for slab in range(4):
            for db in range(2):
                oname = f"O{it}_{slab}_{2*db}"
                dl = bar[idx[oname]] - 1
                if it == 1 and slab == 3:
                    if db == 0:
                        a = [valu("v_add_u32", v(AK), fin_off & 0xffffffff, v(AXR))] + [valu("v_add_u32", v(AK + 1 + n), fin_off & 0xffffffff, v(AXW + n)) for n in range(2)]
                        tasks.append(Task("finadr", a, S_("V1_0_0"), S_("V1_1_0")))
                    tasks.append(Task(f"x{it}_{slab}_{db}", task_x(slab, db, 8192 * db, AK + 1), E_("V1_3_3") + 3, bar[idx["O1_3_0"]] - 1))
                    continue
                e0 = max(E_(f"V{it}_{slab}_3") + 3, bar[idx[oname] - 1] + 0.5)
                tasks.append(Task(f"x{it}_{slab}_{db}", task_x(slab, db), e0, dl))
    tasks.sort(key=lambda t: t.earliest)
    extra = {}
    if not CFG.get("swap", 1):
        extra[CFG.get("tq1", "Q0_2")] = [([], vload("buffer_load_dword", DUMMY, TQ, SQ, 0, 1024, CFG["wflags"], track=False))]
    extra[CFG.get("to0", "K0_4")] = [([salu("s_mov_b32", sOFF, 480, scc=False)], vload("buffer_load_dword", DUMMY, TO, SO, sOFF, 0, CFG["wflags"], track=False))]
    extra[CFG.get("to1", "K1_0")] = extra.get(CFG.get("to1", "K1_0"), []) + [([salu("s_mov_b32", sOFF, 480 + 512 * 896, scc=False)], vload("buffer_load_dword", DUMMY, TO, SO, sOFF, 0, CFG["wflags"], track=False))]
    DQ = []
    for k in range(len(S)):
        pcs = list(extra.get(S[k].name, []))
        for c in win[k]:
            if c.typ in CFG.get("skip", ""):
                continue
            pcs += c.pieces()
        g0 = bar[k] + 1 if k > 0 else 0
        g1 = bar[k + 1] if k + 1 < len(S) else NM - 1
        for n, (s_, d_) in enumerate(pcs):
            due = g0 + (n * (g1 - g0)) // max(len(pcs), 1)
            DQ.append([list(s_), d_, due, g0, g1])
    dqi = 0
    dsi = 0
    while dsi < len(DS) and DS[dsi][1] - Ld < 0:
        emit(DS[dsi][0])
        dsi += 1
    active = []
    ti = 0
    prev_ds = 0
    stats = dict(over=0, flush={})

    def pick(size, g):
        seen = []
        for t in active:
            for k, ins in enumerate(t.ins[:6]):
                if slots_of(ins) <= size and all(indep(ins, b) for b in seen):
                    if all(need_states(p, ins) <= d for d, p in enumerate(reversed(P[-3:]))):
                        return t.ins.pop(k)
                seen.append(ins)
            seen += t.ins[6:]
            if len(seen) > 40:
                break
        return None

    stop = CFG.get("stop")
    for g in range(NM):
        if stop and g == S_(stop):
            break
        if stamps and any(g == S_(n_) for n_ in stamps if n_ in idx):
            stamp()
        emit(M[g])
        while ti < len(tasks) and tasks[ti].earliest <= g:
            active.append(tasks[ti])
            ti += 1
        slots = 2
        sslot = (g + 1) not in newfrag
        lastdl = max([k for k, t in enumerate(active) if t.deadline <= g], default=-1)
        if g in bargap or g in checks:
            pass
        if lastdl >= 0:
            for t in active[:lastdl + 1]:
                if t.ins:
                    n = sum(slots_of(x) for x in t.ins)
                    stats["over"] += n
                    stats["flush"][t.name] = n
                for x in t.ins:
                    emit(x)
                t.ins = []
            slots = 0
        if g in checks:
            it, j = checks[g]
            emit(raw(f"s_cbranch_vccnz L_rare_{it}_{j}", "branch", (), {"vcc"}))
            emit(label(f"L_back_{it}_{j}"))
        if g in bargap:
            i = bargap[g]
            while dqi < len(DQ) and DQ[dqi][4] <= g:
                for x in DQ[dqi][0]:
                    emit(x)
                emit(DQ[dqi][1])
                stats["over"] += 2
                dqi += 1
            if S[i - 1].name in CFG.get("probe", []):
                stamp()
                emit(wait(vm=0))
                stamp()
            emit(I("VMWAIT", "vmwait", meta={"chunks": [c.name for c in S[i].chunks], "lg": "dsw"}))
            emit(raw("s_barrier", "barrier"))
            sslot = False
        want_dma = dqi < len(DQ) and DQ[dqi][2] <= g and not DQ[dqi][0]
        if sslot and dqi < len(DQ) and DQ[dqi][0] and DQ[dqi][3] <= g + 1:
            emit(DQ[dqi][0].pop(0))
            sslot = False
            if DQ[dqi][0] and slots > 0:
                emit(DQ[dqi][0].pop(0))
                slots -= 1
        nds = 0
        cap = 2 if prev_ds < 2 else 1
        while dsi < len(DS) and nds < cap:
            d, u, f, i = DS[dsi]
            if i > 0 and g < bar[i]:
                break
            if f is not None and f.idx >= NFR and fr_lu[f.idx - NFR] > g:
                break
            due = u - Ld
            if nds == 1 and f is not None and DS[dsi - 1][2] is f:
                pass
            elif due > g:
                break
            elif prev_ds == 2 and due > g - 2:
                break
            emit(d)
            dsi += 1
            nds += 1
        prev_ds = nds
        slots -= nds
        if slots == 2 and want_dma:
            emit(DQ[dqi][1])
            dqi += 1
            slots = 0
        while slots > 0:
            x = pick(slots, g)
            if x is None:
                break
            emit(x)
            slots -= slots_of(x)
        active = [t for t in active if t.ins]
    if stop:
        emit(wait(vm=0, lg=0))
        emit(raw("s_barrier", "barrier"))
        emit(nop(15))
        dump = CFG["dump"]
        emit(salu("s_lshl_b32", "s4", "s2", 2))
        emit(salu("s_add_u32", "s4", "s4", sWV))
        emit(salu("s_mul_i32", "s4", "s4", 1024 * len(dump), scc=False))
        emit(salu("s_mov_b32", f"s{SW+2}", 0x10000000, scc=False))
        for k, (p_, r_) in enumerate(dump):
            emit(vstore("buffer_store_dwordx4", (p_, r_, 4), VL, SW, "s4"))
            emit(salu("s_add_u32", "s4", "s4", 1024))
        emit(wait(vm=0))
        emit(raw("s_branch L_end", "branch"))
    if "end" in stamps:
        stamp()
    emit(salu("s_and_b32", "s4", "s2", 0xfc))
    for p in range(1, 4):
        emit(salu("s_xor_b32", "s5", sJ, p))
        emit(salu("s_add_u32", "s5", "s5", "s4"))
        emit(salu("s_mul_i32", "s5", "s5", 12, scc=False))
        emit(salu("s_add_u32", "s5", "s5", sWV))
        emit(salu("s_add_u32", "s5", "s5", 4 * (p - 1)))
        emit(salu("s_mul_i32", f"s{sP+2*(p-1)}", "s5", 7168, scc=False))
        emit(salu("s_add_u32", f"s{sP+2*(p-1)+1}", f"s{sP+2*(p-1)}", 4096))
    for p in range(1, 4):
        emit(salu("s_mul_i32", "s5", "s2", 12, scc=False))
        emit(salu("s_add_u32", "s5", "s5", sWV))
        emit(salu("s_add_u32", "s5", "s5", 4 * (p - 1)))
        emit(salu("s_mul_i32", f"s{sG+2*(p-1)}", "s5", 7168, scc=False))
        emit(salu("s_add_u32", f"s{sG+2*(p-1)+1}", f"s{sG+2*(p-1)}", 4096))
    pb = CFG.get("pub", "f32")
    stf = CFG.get("stf", "sc1")
    ldf = CFG.get("ldf", "sc1")
    if pb == "f32":
        for Tt in range(7):
            for p in range(1, 4):
                emit(vstore("buffer_store_dwordx4", ("a", outacc(Tt, p), 4), VL, SW, f"s{sP+2*(p-1)+Tt//4}", (Tt % 4) * 1024, stf))
    else:
        emit(valu("v_lshrrev_b32", "v108", 1, VL))
        k = 0
        for tp in range(4):
            for p in range(1, 4):
                nt_ = 2 if tp < 3 else 1
                tb = 16 * (k % 4)
                k += 1
                for u in range(nt_):
                    for i in range(4):
                        emit(valu("v_accvgpr_read_b32", v(tb + 4 * u + i), f"a{outacc(2*tp+u, p)+i}"))
                for u in range(nt_):
                    for i in range(2):
                        emit(valu("v_cvt_pk_bf16_f32", v(tb + 8 + 2 * u + i), v(tb + 4 * u + 2 * i), v(tb + 4 * u + 2 * i + 1)))
                if nt_ == 2:
                    emit(vstore("buffer_store_dwordx4", ("v", tb + 8, 4), VL, SW, f"s{sP+2*(p-1)}", tp * 1024, stf))
                else:
                    emit(vstore("buffer_store_dwordx2", ("v", tb + 8, 2), "v108", SW, f"s{sP+2*(p-1)}", 3072, stf))
    emit(valu("v_and_b32", "v100", 15, LANE))
    emit(salu("s_lshl_b32", "s4", sB, 6))
    emit(salu("s_lshl_b32", "s5", sJ, 4))
    emit(salu("s_add_u32", "s4", "s4", "s5"))
    emit(valu("v_add_u32", "v100", "s4", "v100"))
    emit(valu("v_mul_u32_u24", "v100", 1792, "v100"))
    emit(salu("s_mul_i32", "s4", sBR, 896, scc=False))
    emit(salu("s_mul_i32", "s5", sWV, 224, scc=False))
    emit(salu("s_add_u32", "s4", "s4", "s5"))
    emit(valu("v_add_u32", "v100", "s4", "v100"))
    emit(valu("v_lshrrev_b32", "v102", 4, LANE))
    emit(valu("v_lshl_add_u32", "v101", "v102", 3, "v100"))
    emit(valu("v_lshl_add_u32", "v100", "v102", 4, "v100"))
    for Tt in range(7):
        for i in range(4):
            emit(valu("v_accvgpr_read_b32", v(A0 + 4 * Tt + i), f"a{outacc(Tt, 0)+i}"))
    emit(valu("v_cmp_eq_u32", "vcc", 0, LANE))
    emit(valu("v_mov_b32", "v103", 0x7ffffff0))
    emit(valu("v_mov_b32", "v104", "s2"))
    emit(valu("v_cndmask_b32", "v104", "v103", "v104", "vcc"))
    emit(valu("v_mov_b32", "v105", 1))
    emit(salu("s_and_b32", "s4", "s2", 0xfc))
    emit(valu("v_mov_b32", "v106", "s4"))
    emit(valu("v_cndmask_b32", "v106", "v103", "v106", "vcc"))
    emit(wait(vm=0))
    emit(raw("s_barrier", "barrier"))
    if "pub" in stamps:
        stamp()
    emit(raw(f"s_cmp_lg_u32 {sWV}, 0", "salu", {"scc"}, {sWV}))
    emit(raw("s_cbranch_scc1 " + ("L_go" if CFG.get("poll1") else "L_noflag"), "branch"))
    emit(I(f"buffer_store_byte v105, v104, s[{SDBG}:{SDBG+3}], 0 offen sc1", "cond", (), {"v105", "v104"}))
    emit(label("L_noflag"))
    emit(salu("s_mov_b32", "s6", 0x100000, scc=False))
    emit(label("L_poll"))
    emit(I(f"buffer_load_dword v107, v106, s[{SDBG}:{SDBG+3}], 0 offen sc1", "cond", {"v107"}, {"v106"}))
    emit(wait(vm=0))
    emit(I("v_readfirstlane_b32 s5, v107", "valu", {"s5"}, {"v107"}))
    emit(salu("s_sub_u32", "s6", "s6", 1))
    emit(raw("s_cbranch_scc1 L_go", "branch"))
    emit(raw("s_cmp_eq_u32 s5, 0x01010101", "salu", {"scc"}, {"s5"}))
    emit(raw("s_cbranch_scc1 L_go", "branch"))
    if CFG.get("sleep"):
        emit(raw(f"s_sleep {CFG['sleep']}", "salu"))
    emit(raw("s_branch L_poll", "branch"))
    emit(label("L_go"))
    if CFG.get("poll1"):
        emit(raw("s_barrier", "barrier"))
    if "go" in stamps:
        stamp()

    def fin_tile(Tt):
        d = E + 2 * Tt
        for i in range(2):
            emit(valu("v_cvt_pk_bf16_f32", v(d + i), v(A0 + 4 * Tt + 2 * i), v(A0 + 4 * Tt + 2 * i + 1)))
        if Tt % 2 == 1:
            b = d - 2
            emit(swap("v_permlane32_swap_b32", v(b), v(b + 2)))
            emit(swap("v_permlane32_swap_b32", v(b + 1), v(b + 3)))
            emit(swap("v_permlane16_swap_b32", v(b), v(b + 2)))
            emit(swap("v_permlane16_swap_b32", v(b + 1), v(b + 3)))
            emit(vstore("buffer_store_dwordx4", ("v", b, 4), "v100", SOUT, 0, (Tt - 1) * 32, CFG.get("outf", "")))
    if pb == "f32":
        for Tt in range(7):
            for p in range(1, 4):
                emit(vload("buffer_load_dwordx4", ("v", 12 * Tt + 4 * (p - 1), 4), VL, SW, f"s{sG+2*(p-1)+Tt//4}", (Tt % 4) * 1024, ldf))
        for Tt in range(7):
            emit(wait(vm=3 * (6 - Tt) + (Tt // 2 if Tt < 6 else 3)))
            for p in range(3):
                for i in range(4):
                    emit(valu("v_add_f32", v(A0 + 4 * Tt + i), v(A0 + 4 * Tt + i), v(12 * Tt + 4 * p + i)))
            fin_tile(Tt)
    else:
        for tp in range(4):
            for p in range(1, 4):
                if tp < 3:
                    emit(vload("buffer_load_dwordx4", ("v", 12 * tp + 4 * (p - 1), 4), VL, SW, f"s{sG+2*(p-1)}", tp * 1024, ldf))
                else:
                    emit(vload("buffer_load_dwordx2", ("v", 12 * tp + 4 * (p - 1), 2), "v108", SW, f"s{sG+2*(p-1)}", 3072, ldf))
        for tp in range(4):
            emit(wait(vm=3 * (3 - tp) + tp))
            for u in range(2 if tp < 3 else 1):
                Tt = 2 * tp + u
                for p in range(3):
                    for i in range(2):
                        src = v(12 * tp + 4 * p + 2 * u + i)
                        emit(valu("v_lshlrev_b32", v(64), 16, src))
                        emit(valu("v_and_b32", v(65), 0xffff0000, src))
                        emit(valu("v_add_f32", v(A0 + 4 * Tt + 2 * i), v(A0 + 4 * Tt + 2 * i), v(64)))
                        emit(valu("v_add_f32", v(A0 + 4 * Tt + 2 * i + 1), v(A0 + 4 * Tt + 2 * i + 1), v(65)))
                fin_tile(Tt)
    emit(vstore("buffer_store_dwordx2", ("v", E + 12, 2), "v101", SOUT, 0, 192, CFG.get("outf", "")))
    if stamps:
        emit(wait(vm=0))
        stamp()
        emit(wait(lg=0))
        emit(salu("s_mov_b32", f"s{SW+2}", 0x10000000, scc=False))
        emit(salu("s_lshl_b32", "s4", "s2", 10))
        emit(salu("s_add_u32", "s4", "s4", 200000000))
        emit(raw(f"s_cmp_lg_u32 {sWV}, 0", "salu", {"scc"}, {sWV}))
        emit(raw("s_cbranch_scc1 L_end", "branch"))
        emit(valu("v_mov_b32", "v1", 0))
        for k in range(nst[0]):
            emit(valu("v_mov_b32", "v0", f"s{sregs[k]}"))
            emit(vstore("buffer_store_dword", "v0", "v1", SW, "s4", 4 * k))
        emit(wait(vm=0))
    emit(label("L_end"))
    emit(raw("s_endpgm", "branch"))
    main = P

    Rr = []
    r1, rt, F0 = "v251", "v253", 254
    for it in range(2):
        for j in range(16):
            if stop and f"L_back_{it}_{j}:" not in {x.t for x in main}:
                continue
            Rr.append(label(f"L_rare_{it}_{j}"))
            Rr.append(nop(9))
            Rr.append(raw(f"s_call_b64 s[{sRET}:{sRET+1}], L_rh_{2 if j == 15 else (j & 1)}", "branch"))
            Rr.append(raw(f"s_call_b64 s[{sRET}:{sRET+1}], L_pr_{j}", "branch"))
            Rr += task_cvt(j)
            Rr.append(nop(1))
            Rr.append(raw(f"s_branch L_back_{it}_{j}", "branch"))
    for var in range(3):
        cur = sbuf(1 if var else 0)
        nxt = None if var == 2 else sbuf(0 if var else 1)
        Rr.append(label(f"L_rh_{var}"))
        for n in range(2):
            r = cur + 8 * n
            Rr += max8(r1, r) + xlane("v_max_f32", r1, rt)
            Rr.append(valu("v_ceil_f32", r1, r1))
            Rr.append(valu("v_max_f32", r1, 0, r1))
            for i in range(4):
                Rr.append(valu("v_sub_f32", v(NEGM + 4 * n + i), v(NEGM + 4 * n + i), r1))
            for i in range(8):
                Rr.append(valu("v_sub_f32", v(r + i), v(r + i), r1))
                if nxt is not None:
                    Rr.append(valu("v_sub_f32", v(nxt + 8 * n + i), v(nxt + 8 * n + i), r1))
            Rr.append(valu("v_sub_f32", rt, 0, r1))
            Rr.append(trans("v_exp_f32", v(F0 + n), rt))
            Rr.append(valu("v_mul_f32", v(L_ + n), v(L_ + n), v(F0 + n)))
        Rr += task_exp(1 if var else 0)
        Rr.append(nop(1))
        Rr.append(raw(f"s_setpc_b64 s[{sRET}:{sRET+1}]", "branch"))
    for k in range(15, 0, -1):
        Rr.append(label(f"L_pr_{k}"))
        for n in range(2):
            for i in range(4):
                pr = v(preg(k - 1, n) + i)
                Rr.append(valu("v_lshlrev_b32", r1, 16, pr))
                Rr.append(valu("v_and_b32", rt, 0xffff0000, pr))
                Rr.append(valu("v_mul_f32", r1, r1, v(F0 + n)))
                Rr.append(valu("v_mul_f32", rt, rt, v(F0 + n)))
                Rr.append(valu("v_cvt_pk_bf16_f32", pr, r1, rt))
    Rr.append(label("L_pr_0"))
    Rr.append(nop(1))
    Rr.append(raw(f"s_setpc_b64 s[{sRET}:{sRET+1}]", "branch"))

    res = []
    nvm = 0
    lastp = {}
    nds = 0
    lastw = None
    for ins in main:
        if ins.k == "vmwait":
            need = max(lastp.get(c, -1) for c in ins.meta["chunks"])
            vm = min(63, nvm - need - 1)
            if CFG.get("novm") and ins.meta["lg"] == "dsw":
                vm = 63
            lg = ins.meta["lg"]
            if lg == "dsw":
                lg = None if lastw is None else min(15, nds - lastw - 1)
                lastw = None
                if CFG.get("nolg"):
                    lg = None
            res.append(wait(vm=vm, lg=lg))
            continue
        if ins.k in VMEMK:
            if ins.meta.get("chunk"):
                lastp[ins.meta["chunk"]] = nvm
            nvm += 1
        if ins.k in ("dsr", "dsw"):
            if ins.k == "dsw":
                lastw = nds
            nds += 1
        res.append(ins)
    res, nw = insert_lgkm(res)
    log = []
    res, nn = pad_hazards(res, log)
    Rr, _ = pad_hazards(Rr)
    stats.update(waits=nw, nops=nn, noplog=log, n=len(res), nr=len(Rr))
    out = []
    out.append(HEADER)
    out.append(f"; @launch grid=(256,1,1) block=(256,1,1) lds={LDS_BYTES}")
    out.append('.amdgcn_target "amdgcn-amd-amdhsa--gfx950"')
    out += [".text", f".globl {NAME}", ".p2align 8", f".type {NAME},@function", f"{NAME}:"]
    out += [x.t for x in res]
    out.append("L_codeend:")
    out += [x.t for x in Rr]
    out += ['.section .rodata,"a"', ".p2align 6", f".amdhsa_kernel {NAME}", "  .amdhsa_next_free_vgpr 512",
            "  .amdhsa_next_free_sgpr 102", "  .amdhsa_accum_offset 256", "  .amdhsa_group_segment_fixed_size 0",
            "  .amdhsa_kernarg_size 104", "  .amdhsa_user_sgpr_count 2", "  .amdhsa_user_sgpr_kernarg_segment_ptr 1",
            "  .amdhsa_system_sgpr_workgroup_id_x 1", ".end_amdhsa_kernel"]
    return "\n".join(out) + "\n", stats, S, win


HEADER = """; Fused GQA attention block x2 (Q-proj, QK^T, softmax, PV, O-proj, cross-workgroup head reduction).
; kernarg: A_x A_k A_v A_wq A_wo B_x B_k B_v B_wq B_wo out debug ws (8 bytes each)"""

if __name__ == "__main__":
    import json
    cfg = json.loads(sys.argv[2]) if len(sys.argv) > 2 else {}
    txt, stats, S, win = gen(cfg)
    open(sys.argv[1], "w").write(txt)
    print("instrs", stats["n"], "rare", stats["nr"], "waits", stats["waits"], "nops", stats["nops"], "overflow slots", stats["over"], "bytes", len(txt))
    print("flush:", stats["flush"])
    print("noplog:", stats["noplog"][:40])
    if cfg.get("showplan"):
        for k in range(-1, len(S)):
            print(k, S[k].name if k >= 0 else "pro", [(c.name, c.slot, c.cstep - k) for c in win[k]])
```

```python
import sys, math
from asmlib import *

NAME = "concat_heads__gqa_block_cached__gqa_block_cached__near_ridge_kernel"

PS = 1056
SLOT = 16 * PS
NSLOT = 9
EXCH = NSLOT * SLOT
LDS_BYTES = 163840

PX = 0
A0, A1 = 128, 160
E = 192
NEGM = 208
L_, C_, RL = 216, 218, 220
AK, AV, AQ, AO = 222, 225, 228, 231
AXW = 234
AXR = 236
VL, VV, VO = "v237", "v238", "v239"
T = 240
TQ, TO = "v248", "v249"
DUMMY = "v250"
TID = "v251"
LANE = "v252"
QB = 0
FR, NFR = 64, 8
BF = 96
QA = 128
OUT = 128
SK, SV, SQ, SO, SX, SW, SOUT, SDBG, SCODE = 8, 12, 16, 20, 24, 28, 32, 36, 40
sM0W, sGK, sGQ, sGO = "s44", "s45", "s46", "s47"
sOFF = "s48"
sC, sT2 = "s49", "s50"
sWV, sJ, sB, sBR = "s51", "s52", "s53", "s54"
sRET = 56
sP = 8
sG = 24
sGKi = ("s58", "s59")
sGQi = ("s60", "s61")
sOI = ("s62", "s63")
sOT = 64
sR128 = "s68"
sVB, sOB = "s69", "s55"
sM0X, sGX = "s6", "s7"
TB = 40
VX = f"v{TB}"
AXX = TB + 1
PB = 96
FLAGS = 16 << 20

CSCALE = math.log2(math.e) / 16.0


def f32hex(x):
    import struct
    return "0x%08x" % struct.unpack("<I", struct.pack("<f", x))[0]


class Chunk:
    def __init__(self, name, typ, srd, voff, gbase, const, G, flags, hbm):
        self.name, self.typ, self.srd, self.voff, self.gbase, self.const, self.G = name, typ, srd, voff, gbase, const, G
        self.flags, self.hbm = flags, hbm
        self.slot = None
        self.cstep = None
        self.istep = None
        self.rel = 2
        self.pre = []
        self.odd8 = False
        self.npc = 4

    def pieces(self, full=False):
        out = []
        for j in range(4):
            s = list(self.pre) if j == 0 else []
            if self.typ == "x":
                if j >= self.npc:
                    break
                imm = (j & 1) * PS
                if j % 2 == 0 or full:
                    s.append(salu("s_add_u32", "m0", sM0X, self.slot * SLOT + (j >> 1) * 8 * PS))
                s.append(salu("s_add_u32", sOFF, self.gbase, self.const + (j >> 1) * 128 + (j & 1) * 896 - imm))
            else:
                imm = j * PS - (24 if (self.odd8 and j & 1) else 0)
                if j == 0 or full:
                    s.append(salu("s_add_u32", "m0", sM0W, self.slot * SLOT))
                s.append(salu("s_add_u32", sOFF, self.gbase, self.const + j * self.G - imm))
            out.append((s, dma(self.voff, self.srd, sOFF, imm, self.flags, chunk=self.name)))
        return out

    def addr(self, pat, off):
        w, r = divmod(self.slot, 3)
        return f"v{pat + w}", r * SLOT + off


def ch_x(c):
    ch = Chunk(f"x{c}", "x", SX, VX, sGX, 480 + 256 * c, 0, CFG["xflags"], True)
    ch.npc = 4 if c < 3 else 2
    ch.rel = CFG.get("relq", 2)
    return ch


def ch_q(it, s, i):
    c = Chunk(f"q{it}_{s}_{i}", "W", SQ, VL, sGQi[it], (32 * s + 4 * i) * 8192, 8192, CFG.get("q0flags", CFG["wflags"]) if it == 0 else CFG["wflags"], False)
    c.odd8 = bool(CFG.get("uq", 1))
    if it == 0:
        c.rel = CFG.get("relq", 2)
    return c


def ch_k(it, j):
    blk, jj = divmod(j, 4)
    return Chunk(f"k{it}_{j}", "K", SK, VL, sGKi[it], (128 * blk + 2 * jj) * 512, 4096, CFG.get("kvflags", "nt"), True)


def ch_v(it, slab, blk):
    c = Chunk(f"v{it}_{slab}_{blk}", "V", SV, VV, sVB, 128 * blk * 512, 4096, CFG.get("kvflags", "nt"), True)
    if blk == 0:
        c.pre = [salu("s_xor_b32", sVB, sR128, slab * 128), salu("s_add_u32", sVB, sVB, sGKi[it])]
    return c


def ch_o(it, slab, o, i):
    db, hh = divmod(o, 2)
    row = hh * 256 + 32 * db + 16 * i
    c = Chunk(f"o{it}_{slab}_{o}_{i}", "W", SO, VO, sOB, 480 + row * 896, 896, CFG["wflags"], False)
    if o == 0 and i == 0:
        c.pre = [salu("s_add_u32", sOB, f"s{sOT+slab}", sOI[it])]
    return c


class Step:
    def __init__(self, name, chunks):
        self.name = name
        self.chunks = chunks
        self.build = None
        self.mf = []
        self.ds = []


CFG = dict(xflags="nt", wflags="", q0flags="nt", tflags="", L=7, stop=None)

fragctr = [0]


class Frag:
    def __init__(self):
        self.idx = fragctr[0]
        fragctr[0] += 1
        self.reg = FR + 4 * (self.idx % NFR)
        self.last_use = None


def xreg(n, s):
    return (PX + 8 * (s + 6) if s < 10 else A1 + 8 * (s - 10)) + 4 * n


def preg(j, n):
    return PX + 8 * j + 4 * n


def qacc(Tt, n):
    return QA + 16 * (Tt // 2) + 8 * n + 4 * (Tt & 1)


def qb(s, n):
    return QB + 8 * s + 4 * n


def sbuf(j, it=0):
    base = PB if (it == 1 and j <= CFG.get("pbj", 4)) else A0
    return base + 16 * (j & 1)


def stile(j, t, n, it):
    return sbuf(j, it) + 8 * n + 4 * t


def oacc(slab, dt, n):
    return (A1 if slab & 1 else A0) + 16 * (dt // 2) + 8 * n + 4 * (dt & 1)


def outacc(Tt, p):
    return OUT + 16 * Tt + 4 * p


def tr(dst, ch, pat, off):
    a, o = ch.addr(pat, off)
    return ds_read("ds_read_b64_tr_b16", ("a", dst, 2), a, o)


def xreads(ch, c):
    out = []
    for s in range(4 * c, min(4 * c + 4, 14)):
        for n in range(2):
            a, o = ch.addr(AXX, ((s >> 1) & 1) * 8 * PS + n * 128 + (s & 1) * 64)
            out.append(ds_read("ds_read_b128", ("v", xreg(n, s), 4), a, o))
    return out


def step_q(it, s):
    A, B = ch_q(it, s, 0), ch_q(it, s, 1)
    st = Step(f"Q{it}_{s}", [A, B])
    xcs = [ch_x(c + 1) for c, w in enumerate(CFG.get("xs", [3, 7, 11])) if it == 0 and w == s]
    st.chunks += xcs

    def build():
        xr = [r for xc in xcs for r in xreads(xc, int(xc.name[1]))]
        for Tt in range(16):
            f = Frag()
            u = len(st.mf)
            off = (Tt >> 1) * 64 + (Tt & 1) * (8 if CFG.get("uq", 1) else 32)
            st.ds.append((tr(f.reg, A, AQ, off), u, f))
            st.ds.append((tr(f.reg + 2, B, AQ, off), u, f))
            if xr and Tt >= 1:
                st.ds.append((xr.pop(0), u + 1, None))
                if len(xr) > 15 - Tt:
                    st.ds.append((xr.pop(0), u + 1, None))
            for n in range(2):
                acc = ("a", qacc(Tt, n))
                st.mf.append(mfma(acc, ("a", f.reg), ("v", xreg(n, s)), 0 if s == 0 else acc))
            f.lu = len(st.mf) - 1
    st.build = build
    return st


def step_k(it, j):
    Kc = ch_k(it, j)
    st = Step(f"K{it}_{j}", [Kc])

    def build():
        for t in range(2):
            for s in range(8):
                f = Frag()
                u = len(st.mf)
                a, o = Kc.addr(AK, t * 512 + s * 64)
                st.ds.append((ds_read("ds_read_b128", ("a", f.reg, 4), a, o), u, f))
                for n in range(2):
                    acc = ("v", stile(j, t, n, it))
                    c = acc if s else (0 if j == 0 else ("v", NEGM + 4 * n))
                    st.mf.append(mfma(acc, ("a", f.reg), ("a", qb(s, n)), c))
                f.lu = len(st.mf) - 1
    st.build = build
    return st


def step_v(it, slab, blk):
    Vc = ch_v(it, slab, blk)
    st = Step(f"V{it}_{slab}_{blk}", [Vc])

    def build():
        for jj in range(4):
            for dt in range(4):
                f = Frag()
                u = len(st.mf)
                st.ds.append((tr(f.reg, Vc, AV, (2 * jj) * 128 + dt * 32), u, f))
                st.ds.append((tr(f.reg + 2, Vc, AV, (2 * jj + 1) * 128 + dt * 32), u, f))
                for n in range(2):
                    acc = ("v", oacc(slab, dt, n))
                    st.mf.append(mfma(acc, ("a", f.reg), ("v", preg(4 * blk + jj, n)), 0 if (blk == 0 and jj == 0) else acc))
                f.lu = len(st.mf) - 1
    st.build = build
    return st


octr = [0]


def step_o(it, slab, o, exoff=0, axr=AXR):
    A, B = ch_o(it, slab, o, 0), ch_o(it, slab, o, 1)
    st = Step(f"O{it}_{slab}_{o}", [A, B])
    hh = o % 2

    def build():
        bf = BF + 16 * (octr[0] & 1)
        first = octr[0] == 0
        octr[0] += 1
        for Tt in range(7):
            f = Frag()
            u = len(st.mf)
            if Tt == 0:
                st.ds.append((ds_read("ds_read_b128", ("a", bf, 4), f"v{axr}", exoff + (hh * 4) * 1024), u, None))
            st.ds.append((tr(f.reg, A, AO, Tt * 32), u, f))
            st.ds.append((tr(f.reg + 2, B, AO, Tt * 32), u, f))
            if Tt == 0:
                for p in range(1, 4):
                    st.ds.append((ds_read("ds_read_b128", ("a", bf + 4 * p, 4), f"v{axr}", exoff + (hh * 4 + p) * 1024), u + p, None))
            for p in range(4):
                acc = ("a", outacc(Tt, p))
                st.mf.append(mfma(acc, ("a", f.reg), ("a", bf + 4 * p), 0 if first else acc))
            f.lu = len(st.mf) - 1
    st.build = build
    return st


def step_oo(it, slab, exoff, axr):
    ch = [ch_o(it, slab, o, i) for o in (2, 3) for i in (0, 1)]
    st = Step(f"O{it}_{slab}_2", ch)

    def build():
        b0 = BF + 16 * (octr[0] & 1)
        b1 = BF + 16 * ((octr[0] + 1) & 1)
        octr[0] += 2
        for Tt in range(7):
            for hh, bf in ((0, b0), (1, b1)):
                f = Frag()
                u = len(st.mf)
                if Tt == 0 and hh == 0:
                    st.ds.append((ds_read("ds_read_b128", ("a", bf, 4), f"v{axr}", exoff), u, None))
                st.ds.append((tr(f.reg, ch[2 * hh], AO, Tt * 32), u, f))
                st.ds.append((tr(f.reg + 2, ch[2 * hh + 1], AO, Tt * 32), u, f))
                if Tt == 0:
                    for p in range(1 - hh, 4):
                        st.ds.append((ds_read("ds_read_b128", ("a", bf + 4 * p, 4), f"v{axr}", exoff + (hh * 4 + p) * 1024), u + p, ("B", hh)))
                for p in range(4):
                    acc = ("a", outacc(Tt, p))
                    st.mf.append(mfma(acc, ("a", f.reg), ("a", bf + 4 * p), acc))
                f.lu = len(st.mf) - 1
    st.build = build
    return st


def v(n):
    return f"v{n}"


def xlane(op, x, t):
    return [valu("v_mov_b32", t, x), swap("v_permlane32_swap_b32", t, x), valu(op, x, x, t),
            valu("v_mov_b32", t, x), swap("v_permlane16_swap_b32", t, x), valu(op, x, x, t)]


def max8(dst, r):
    return [valu("v_max3_f32", dst, v(r), v(r + 1), v(r + 2)), valu("v_max3_f32", dst, dst, v(r + 3), v(r + 4)),
            valu("v_max3_f32", dst, dst, v(r + 5), v(r + 6)), valu("v_max_f32", dst, dst, v(r + 7))]


def interleave(a, b):
    out = []
    for i in range(max(len(a), len(b))):
        if i < len(a):
            out.append(a[i])
        if i < len(b):
            out.append(b[i])
    return out


def task_firstmax(it):
    seqs = []
    for n in range(2):
        m, t = v(T + n), v(T + 2 + n)
        r = sbuf(0, it) + 8 * n
        s = max8(m, r) + xlane("v_max_f32", m, t)
        s.append(valu("v_ceil_f32", m, m))
        for i in range(4):
            s.append(valu("v_sub_f32", v(NEGM + 4 * n + i), 0, m))
        s.append(valu("v_mov_b32", v(L_ + n), 0))
        for i in range(8):
            s.append(valu("v_sub_f32", v(r + i), v(r + i), m))
        seqs.append(s)
    return interleave(*seqs)


def task_exp(cur):
    out = []
    for n in range(2):
        r = cur + 8 * n
        e = E + 8 * n
        c = v(C_ + n)
        for i in range(8):
            out.append(trans("v_exp_f32", v(e + i), v(r + i)))
            if i == 2:
                out.append(valu("v_add_f32", c, v(e), v(e + 1)))
            elif i > 2:
                out.append(valu("v_add_f32", c, c, v(e + i - 1)))
        out.append(valu("v_add_f32", c, c, v(e + 7)))
    return out


def task_cvt(j):
    out = []
    for n in range(2):
        for i in range(4):
            out.append(valu("v_cvt_pk_bf16_f32", v(preg(j, n) + i), v(E + 8 * n + 2 * i), v(E + 8 * n + 2 * i + 1)))
    return out


def task_chk():
    return [valu("v_max_f32", v(T), v(C_), v(C_ + 1)),
            I(f"v_cmp_lt_f32 vcc, {sT2}, v{T}", "valu", {"vcc"}, {sT2, v(T)})]


def task_sfin():
    seqs = []
    for n in range(2):
        s = xlane("v_add_f32", v(L_ + n), v(T + 2 + n))
        s.append(trans("v_rcp_f32", v(RL + n), v(L_ + n)))
        seqs.append(s)
    return interleave(*seqs)


def task_qfin(db):
    out = []
    for n in range(2):
        src = QA + 16 * db + 8 * n
        e = E + 8 * n
        t = T + 4 * n
        for i in range(8):
            out.append(valu("v_accvgpr_read_b32", v(e + i), f"a{src+i}"))
        for i in range(8):
            out.append(valu("v_mul_f32", v(e + i), sC, v(e + i)))
        for i in range(4):
            out.append(valu("v_cvt_pk_bf16_f32", v(t + i), v(e + 2 * i), v(e + 2 * i + 1)))
        if not CFG.get("uq", 1):
            out.append(swap("v_permlane32_swap_b32", v(t), v(t + 2)))
            out.append(swap("v_permlane32_swap_b32", v(t + 1), v(t + 3)))
            out.append(swap("v_permlane16_swap_b32", v(t), v(t + 2)))
            out.append(swap("v_permlane16_swap_b32", v(t + 1), v(t + 3)))
        for i in range(4):
            out.append(valu("v_accvgpr_write_b32", f"a{qb(db, n)+i}", v(t + i)))
    if not CFG.get("uq", 1):
        a, b = out[:28], out[28:]
        out = a[:20] + b[:8] + a[20:22] + b[8:12] + a[22:24] + b[12:16] + a[24:28] + b[16:]
    return out


def task_xmul(slab, db):
    out = []
    for n in range(2):
        src = (A1 if slab & 1 else A0) + 16 * db + 8 * n
        for i in range(8):
            out.append(valu("v_mul_f32", v(src + i), v(RL + n), v(src + i)))
        for i in range(4):
            out.append(valu("v_cvt_pk_bf16_f32", v(src + i), v(src + 2 * i), v(src + 2 * i + 1)))
    return out


def task_xw(slab, db, exoff=0, axw=AXW):
    base = (A1 if slab & 1 else A0) + 16 * db
    return [ds_write("ds_write_b128", v(axw + n), ("v", base + 8 * n, 4), exoff) for n in range(2)]


class Task:
    def __init__(self, name, ins, earliest, deadline):
        self.name, self.ins, self.earliest, self.deadline = name, list(ins), earliest, deadline


def slots_of(i):
    return 2 if i.k in ("trans", "swap", "dma", "vst", "vld", "dsw") else 1


def indep(a, b):
    return not (a.d & (b.u | b.d) or a.u & b.d)


def make_steps():
    S = []
    for s in range(14):
        S.append(step_q(0, s))
    qpos = CFG.get("qpos", [0, 2, 3, 5, 7, 8, 10, 12, 13, 15])
    q = 0
    for j in range(16):
        S.append(step_k(0, j))
        while q < len(qpos) and qpos[q] == j:
            S.append(step_q(1, q))
            q += 1
    seq = CFG.get("seq", "V00 Q10 V01 Q11 V02 Q12 V03 Q13 V10 V11 V12 O00 O01 V13 O02 V20 O03 V21 O10 V22 O11 V23 V30 O12 V31 V32 O13 V33 "
                  "K0 O20 K1 K2 O21 K3 K4 O22 K5 K6 O23 K7 K8 O30 K9 K10 O31 K11 K12 O32 K13 K14 K15 O33").split()
    for x in seq:
        if x[0] == "V":
            S.append(step_v(0, int(x[1]), int(x[2])))
        elif x[0] == "O":
            S.append(step_o(0, int(x[1]), int(x[2])))
        elif x[0] == "Q":
            S.append(step_q(1, int(x[1:])))
        else:
            S.append(step_k(1, int(x[1:])))
    for blk in range(4):
        S.append(step_v(1, 0, blk))
    for slab in range(1, 4):
        for blk in range(4):
            S.append(step_v(1, slab, blk))
            S.append(step_o(1, slab - 1, blk))
    for o in range(2):
        S.append(step_o(1, 3, o, exoff=0, axr=AK))
    S.append(step_oo(1, 3, 8192, AK))
    return S


def plan_dma(S, xch):
    H, W = [], []
    for i, st in enumerate(S):
        for c in st.chunks:
            c.cstep = i
            (H if c.hbm else W).append(c)
    names = [st.name for st in S]
    free_at = {sl: -1 for sl in range(NSLOT)}
    xch.slot = 0
    free_at[0] = 0
    win = {k: [] for k in range(-1, len(S))}
    LW, LH = CFG.get("LW", 2), CFG.get("LH", 3)
    MW, MH = CFG.get("MW", 4), CFG.get("MH", 9)
    mode = CFG.get("plan", "fifo")
    pat = CFG.get("pat", [[2, 0], [0, 0], [0, 2], [0, 2]])
    anchors = sorted(names.index(n) + d for n, d in CFG.get("anchors", [["K0_0", 0]]))
    over = {names.index(n) + d: x for n, d, x in CFG.get("over", [])}
    fin = None
    for k in range(-1, len(S)):
        if k >= len(S) - 5 and fin is None:
            fs = [sl for sl in range(NSLOT) if free_at[sl] is not None and free_at[sl] <= k]
            if fs:
                fin = fs[0]
                free_at[fin] = None
            else:
                assert k < len(S) - 4, "no slot for final exchange"

        def take(q):
            fs = [sl for sl in range(NSLOT) if free_at[sl] is not None and free_at[sl] <= k]
            if not fs or not q:
                return False
            c = q.pop(0)
            sl = min(fs, key=lambda s_: free_at[s_])
            c.slot, c.istep = sl, k
            free_at[sl] = c.cstep + c.rel
            win[k].append(c)
            return True
        if k == -1:
            for ty in CFG.get("pro", "WWWWHWW"):
                take(W if ty == "W" else H)
            continue
        if mode == "fifo":
            n = 0
            while n < 3 and (H or W):
                q = H if (H and (not W or H[0].cstep <= W[0].cstep)) else W
                if not take(q):
                    break
                n += 1
        else:
            a = [x for x in anchors if x <= k]
            if k in over:
                mH, mW = over[k]
            elif not a:
                mH, mW = 0, 2
            else:
                mH, mW = pat[(k - a[-1]) % len(pat)]
            if k not in over and a and (not W or W[0].cstep > k + MW + 1):
                mH = 2
            nH = nW = 0
            while True:
                uh = H and H[0].cstep <= k + LH and nH < 2
                uw = W and W[0].cstep <= k + LW
                if uw and (not uh or W[0].cstep - LW <= H[0].cstep - LH):
                    if not take(W):
                        break
                    nW += 1
                elif uh:
                    if not take(H):
                        break
                    nH += 1
                else:
                    break
            while nH < mH and H and H[0].cstep <= k + MH and take(H):
                nH += 1
            while nW < mW and W and W[0].cstep <= k + MW and take(W):
                nW += 1
        for q in (H, W):
            assert not q or q[0].cstep > k + 1, ("late", q[0].name, k)
    assert not H and not W
    return win, fin


def gen(cfg=None):
    if cfg:
        CFG.update(cfg)
    fragctr[0] = 0
    octr[0] = 0
    S = make_steps()
    xch = ch_x(0)
    win, fslot = plan_dma(S, xch)
    idx = {st.name: i for i, st in enumerate(S)}
    fin_off = fslot * SLOT - EXCH
    P = []
    emit = P.append

    emit(raw("s_cmp_ge_u32 s2, 256", "salu", {"scc"}))
    emit(raw("s_cbranch_scc1 L_end", "branch"))
    stamps = CFG.get("stamps", [])
    sregs = [90] + list(range(70, 90, 2)) + list(range(92, 102, 2))
    nst = [0]

    def stamp():
        emit(raw(f"{'s_memtime' if CFG.get('cyc') else 's_memrealtime'} s[{sregs[nst[0]]}:{sregs[nst[0]]+1}]", "smem"))
        nst[0] += 1
    if stamps:
        stamp()
    emit(raw("s_load_dwordx16 s[64:79], s[0:1], 0", "smem"))
    emit(raw("s_load_dwordx8 s[80:87], s[0:1], 64", "smem"))
    emit(raw("s_load_dwordx2 s[88:89], s[0:1], 96", "smem"))
    emit(raw("s_getpc_b64 s[40:41]", "salu", {"s40", "s41"}))
    emit(label("L_pc"))
    emit(valu("v_mov_b32", TID, "v0"))
    emit(valu("v_and_b32", LANE, 63, "v0"))
    emit(valu("v_lshrrev_b32", "v1", 6, "v0"))
    emit(salu("s_and_b32", sJ, "s2", 3))
    emit(I(f"v_readfirstlane_b32 {sWV}, v1", "valu", {sWV}, {"v1"}))
    emit(salu("s_lshr_b32", sB, "s2", 3))
    emit(salu("s_bfe_u32", sBR, "s2", 0x10002))
    emit(salu("s_mov_b32", "s42", "L_codeend-L_pc", scc=False))
    emit(salu("s_mov_b32", "s43", 0x20000, scc=False))
    emit(salu("s_lshl_b32", "s3", sB, 12))
    emit(valu("v_lshlrev_b32", "v2", 7, LANE))
    emit(valu("v_cmp_gt_u32", "vcc", 32, LANE))
    emit(valu("v_mov_b32", "v3", 0x7ffffff0))
    emit(valu("v_cndmask_b32", "v2", "v3", "v2", "vcc"))
    emit(salu("s_mul_i32", sM0W, sWV, 4 * PS, scc=False))
    emit(salu("s_lshl_b32", sGK, sWV, 14))
    emit(salu("s_lshl_b32", sGQ, sWV, 16))
    emit(salu("s_mul_i32", sGO, sWV, 3584, scc=False))
    emit(salu("s_and_b32", "s4", sB, 1 if CFG.get("swap", 0) else 0))
    emit(salu("s_xor_b32", "s5", "s4", 1))
    for it_, r_ in ((0, "s4"), (1, "s5")):
        emit(salu("s_lshl_b32", "s6", r_, 10))
        emit(salu("s_add_u32", sGQi[it_], sGQ, "s6"))
        emit(salu("s_lshl_b32", "s6", r_, 18))
        emit(salu("s_add_u32", sGKi[it_], sGK, "s6"))
        emit(salu("s_mul_i32", sOI[it_], r_, 512 * 896, scc=False))
    emit(raw(f"s_cmp_lg_u32 {sWV}, 0", "salu", {"scc"}, {sWV}))
    emit(raw("s_cbranch_scc1 L_nocw", "branch"))
    emit(I(f"buffer_load_dword {DUMMY}, v2, s[40:43], s3 offen", "cond", (), {"v2", "s3", "s40", "s41", "s42", "s43"}))
    emit(label("L_nocw"))
    emit(valu("v_lshlrev_b32", VL, 4, LANE))
    emit(valu("v_cmp_gt_u32", "vcc", 56, LANE))
    emit(valu("v_lshrrev_b32", "v4", 3, LANE))
    emit(valu("v_and_b32", "v5", 7, LANE))
    emit(valu("v_cndmask_b32", VO, "v3", VL, "vcc"))
    emit(valu("v_lshlrev_b32", VV, 9, "v4"))
    emit(valu("v_lshl_add_u32", VV, "v5", 4, VV))
    emit(valu("v_and_b32", "v6", 3, "v4"))
    emit(valu("v_lshlrev_b32", "v6", 1, "v6"))
    emit(valu("v_lshrrev_b32", "v7", 5, LANE))
    emit(valu("v_add_u32", "v6", "v6", "v7"))
    emit(valu("v_mul_u32_u24", "v6", 8 * 896, "v6"))
    emit(valu("v_lshl_add_u32", VX, "v5", 4, "v6"))
    for mb, mw, dq, do in ((112, 28, "v9", None), (28, 7, TQ, TO)):
        emit(salu("s_mul_i32", "s4", sWV, mw, scc=False))
        emit(salu("s_mul_i32", "s5", sB, mb, scc=False))
        emit(salu("s_add_u32", "s4", "s4", "s5"))
        emit(valu("v_add_u32", "v6", "s4", LANE))
        emit(valu("v_lshrrev_b32", "v7", 3, "v6"))
        emit(valu("v_lshlrev_b32", "v7", 13, "v7"))
        emit(valu("v_and_b32", "v8", 7, "v6"))
        emit(valu("v_lshl_add_u32", "v7", "v8", 7, "v7"))
        if do:
            emit(valu("v_cmp_lt_u32", "vcc", 447, "v6"))
            emit(valu("v_lshlrev_b32", "v8", 7, "v6"))
            emit(valu("v_add_u32", "v6", 192 * 896, "v8"))
            emit(valu("v_cndmask_b32", "v8", "v8", "v6", "vcc"))
        emit(valu("v_cmp_gt_u32", "vcc", mw, LANE))
        emit(valu("v_cndmask_b32", dq, "v3", "v7", "vcc"))
        if do:
            emit(valu("v_cndmask_b32", do, "v3", "v8", "vcc"))
    emit(wait(lg=0))
    if "karg" in stamps:
        sregs.remove(92); sregs.insert(1, 92)
        stamp()
    emit(raw(f"s_cmp_eq_u32 {sBR}, 0", "salu", {"scc"}, {sBR}))
    for k in range(10):
        emit(salu("s_cselect_b32", f"s{64+k}", f"s{64+k}", f"s{74+k}", scc=False, uses_scc=True))
    emit(salu("s_mul_i32", "s4", sB, 57344, scc=False))
    emit(salu("s_add_u32", f"s{SX}", "s64", "s4"))
    emit(salu("s_addc_u32", f"s{SX+1}", "s65", 0, uses_scc=True))
    emit(salu("s_sub_u32", f"s{SX}", f"s{SX}", 480))
    emit(salu("s_subb_u32", f"s{SX+1}", f"s{SX+1}", 0, uses_scc=True))
    emit(salu("s_mov_b32", f"s{SX+2}", 57344 + 480, scc=False))
    emit(salu("s_mov_b32", f"s{SX+3}", 0x20000, scc=False))
    emit(salu("s_lshl_b32", "s4", sJ, 11))
    emit(salu("s_add_u32", f"s{SQ}", "s70", "s4"))
    emit(salu("s_addc_u32", f"s{SQ+1}", "s71", 0, uses_scc=True))
    emit(salu("s_sub_u32", f"s{SQ+2}", 448 * 8192, "s4"))
    emit(salu("s_mov_b32", f"s{SQ+3}", 0x20000, scc=False))
    emit(vload("buffer_load_dword", DUMMY, "v9", SQ, 0, 0, "nt", track=False))
    emit(salu("s_mul_i32", sM0X, sWV, 2 * PS, scc=False))
    emit(salu("s_mul_i32", sGX, sWV, 2 * 896, scc=False))
    for c in [xch] + win[-1][:2]:
        for s_, d_ in c.pieces():
            for x in s_:
                emit(x)
            emit(d_)
    emit(salu("s_lshl_b32", "s4", sB, 3))
    emit(salu("s_lshl_b32", "s5", sJ, 1))
    emit(salu("s_add_u32", "s4", "s4", "s5"))
    emit(salu("s_lshl_b32", "s4", "s4", 18))
    for srd, p in ((SK, 66), (SV, 68)):
        emit(salu("s_add_u32", f"s{srd}", f"s{p}", "s4"))
        emit(salu("s_addc_u32", f"s{srd+1}", f"s{p+1}", 0, uses_scc=True))
        emit(salu("s_mov_b32", f"s{srd+2}", 524288, scc=False))
        emit(salu("s_mov_b32", f"s{srd+3}", 0x20000, scc=False))
    emit(salu("s_mul_i32", "s4", sJ, 1024 * 896, scc=False))
    emit(salu("s_add_u32", f"s{SO}", "s72", "s4"))
    emit(salu("s_addc_u32", f"s{SO+1}", "s73", 0, uses_scc=True))
    emit(salu("s_sub_u32", f"s{SO}", f"s{SO}", 480))
    emit(salu("s_subb_u32", f"s{SO+1}", f"s{SO+1}", 0, uses_scc=True))
    emit(salu("s_mov_b32", f"s{SO+2}", 1024 * 896 + 480, scc=False))
    emit(salu("s_mov_b32", f"s{SO+3}", 0x20000, scc=False))
    emit(salu("s_mov_b32", f"s{SW}", "s88", scc=False))
    emit(salu("s_mov_b32", f"s{SW+1}", "s89", scc=False))
    emit(salu("s_mov_b32", f"s{SW+2}", FLAGS + 1024 * 128, scc=False))
    emit(salu("s_mov_b32", f"s{SW+3}", 0x20000, scc=False))
    emit(salu("s_mov_b32", f"s{SOUT}", "s84", scc=False))
    emit(salu("s_mov_b32", f"s{SOUT+1}", "s85", scc=False))
    emit(salu("s_mov_b32", f"s{SOUT+2}", 2048 * 1792, scc=False))
    emit(salu("s_mov_b32", f"s{SOUT+3}", 0x20000, scc=False))
    emit(salu("s_mov_b32", f"s{SDBG}", "s86", scc=False))
    emit(salu("s_mov_b32", f"s{SDBG+1}", "s87", scc=False))
    emit(salu("s_mov_b32", f"s{SDBG+2}", 256, scc=False))
    emit(salu("s_mov_b32", f"s{SDBG+3}", 0x20000, scc=False))
    emit(salu("s_mov_b32", sC, f32hex(CSCALE), scc=False))
    emit(salu("s_mov_b32", sT2, f32hex(CFG.get("T2", 2.0 ** 20)), scc=False))
    emit(salu("s_bfe_u32", "s4", sB, 0x20001 if CFG.get("rot", 0) else 0))
    emit(salu("s_lshl_b32", sR128, "s4", 7))
    for sl in range(4):
        emit(salu("s_xor_b32", "s5", "s4", sl))
        emit(salu("s_mul_i32", "s5", "s5", 64 * 896, scc=False))
        emit(salu("s_add_u32", f"s{sOT+sl}", "s5", sGO))
    if CFG.get("tlb"):
        lanes = []
        def lane(base, off):
            k = len(lanes)
            lanes.append(1)
            emit(salu("s_add_u32", "s4", f"s{base}", off))
            emit(salu("s_addc_u32", "s5", f"s{base+1}", 0, uses_scc=True))
            emit(raw(f"v_writelane_b32 v10, s4, {k}", "valu", {"v10"}, {"s4", "v10"}))
            emit(raw(f"v_writelane_b32 v11, s5, {k}", "valu", {"v11"}, {"s5", "v11"}))
        emit(valu("v_mov_b32", "v10", f"s{SDBG}"))
        emit(valu("v_mov_b32", "v11", f"s{SDBG+1}"))
        for b_, o_ in ((SK, 0), (SK, 524284), (SV, 0), (SV, 524284), (SO, 480), (SO, 480 + 1024 * 896 - 4), (SW, FLAGS)):
            lane(b_, o_)
        emit(salu("s_and_b32", "s3", "s2", 0xfc))
        emit(salu("s_mul_i32", "s3", "s3", 12 * 3584, scc=False))
        lane(SW, "s3")
        emit(salu("s_add_u32", "s3", "s3", 48 * 3584 - 4))
        lane(SW, "s3")
        emit(salu("s_mul_i32", "s3", sB, 64 * 1792, scc=False))
        lane(SOUT, "s3")
        emit(salu("s_add_u32", "s3", "s3", 64 * 1792 - 4))
        lane(SOUT, "s3")
        emit(raw(f"s_cmp_lg_u32 {sWV}, 0", "salu", {"scc"}, {sWV}))
        emit(raw("s_cbranch_scc1 L_notlb", "branch"))
        emit(I(f"global_load_dword {DUMMY}, v[10:11], off nt", "cond", (), {"v10", "v11"}))
        emit(label("L_notlb"))
    emit(valu("v_and_b32", "v4", 15, LANE))
    emit(valu("v_mul_u32_u24", "v4", PS, "v4"))
    emit(valu("v_lshrrev_b32", "v5", 4, LANE))
    emit(valu("v_lshl_add_u32", v(AK), "v5", 4, "v4"))
    emit(valu("v_lshrrev_b32", "v4", 2, LANE))
    emit(valu("v_mul_u32_u24", "v4", PS, "v4"))
    emit(valu("v_and_b32", "v5", 3, LANE))
    emit(valu("v_lshl_add_u32", v(AV), "v5", 3, "v4"))
    emit(salu("s_lshr_b32", "s4", sWV, 1))
    emit(salu("s_lshl_b32", "s5", "s4", 9))
    emit(valu("v_lshl_add_u32", v(AQ), "v5", 4 if CFG.get("uq", 1) else 3, "v4"))
    emit(valu("v_bfe_u32", "v5", LANE, 2, 1))
    emit(valu("v_mul_u32_u24", "v5", 24 if CFG.get("uq", 1) else 0, "v5"))
    emit(valu("v_sub_u32", v(AQ), v(AQ), "v5"))
    emit(valu("v_add_u32", v(AQ), "s5", v(AQ)))
    emit(salu("s_mul_i32", "s5", sWV, 224, scc=False))
    emit(valu("v_add_u32", v(AO), "s5", v(AV)))
    for pat in (AK, AV, AQ, AO):
        for w in (1, 2):
            emit(valu("v_add_u32", v(pat + w), 3 * SLOT * w, v(pat)))
    emit(valu("v_add_u32", v(AXR), EXCH, VL))
    emit(salu("s_and_b32", "s5", sWV, 1))
    for n in range(2):
        emit(salu("s_lshl_b32", "s3", "s5", 1))
        emit(salu("s_add_u32", "s3", "s3", n))
        emit(salu("s_xor_b32", "s3", "s3", sJ))
        emit(salu("s_lshl_b32", sOFF, "s4", 2))
        emit(salu("s_add_u32", "s3", "s3", sOFF))
        emit(salu("s_lshl_b32", "s3", "s3", 10))
        emit(valu("v_add_u32", v(AXW + n), "s3", v(AXR)))
    emit(valu("v_and_b32", "v4", 7, LANE))
    emit(valu("v_mul_u32_u24", "v4", PS, "v4"))
    emit(valu("v_bfe_u32", "v5", LANE, 3, 1))
    emit(valu("v_lshl_add_u32", "v4", "v5", 9, "v4"))
    emit(valu("v_lshrrev_b32", "v5", 4, LANE))
    emit(valu("v_lshl_add_u32", "v4", "v5", 4, "v4"))
    emit(salu("s_lshl_b32", "s5", "s5", 8))
    emit(valu("v_add_u32", v(AXX), "s5", "v4"))
    for w in (1, 2):
        emit(valu("v_add_u32", v(AXX + w), 3 * SLOT * w, v(AXX)))
    emit(salu("s_lshl_b32", "s3", "s2", 2))
    emit(salu("s_add_u32", "s3", "s3", sWV))
    emit(salu("s_lshl_b32", "s3", "s3", 7))
    emit(salu("s_add_u32", "s3", "s3", FLAGS))
    emit(valu("v_cmp_eq_u32", "vcc", 0, LANE))
    emit(valu("v_mov_b32", v(TB + 6), "s3"))
    emit(valu("v_mov_b32", v(TB + 7), 0))
    emit(valu("v_cndmask_b32", v(TB + 6), "v3", v(TB + 6), "vcc"))
    emit(valu("v_mov_b32", v(TB + 4), "s2"))
    emit(valu("v_mov_b32", v(TB + 5), 1))
    emit(valu("v_cndmask_b32", v(TB + 4), "v3", v(TB + 4), "vcc"))
    if "issued" in stamps:
        stamp()
    emit(I("VMWAIT", "vmwait", meta={"chunks": [xch.name], "lg": None}))
    emit(raw("s_barrier", "barrier"))
    if "xland" in stamps:
        stamp()
    rest = [p_ for c in win[-1][2:] for p_ in c.pieces()]
    for x in xreads(xch, 0):
        emit(x)
    nearly = CFG.get("nearly", 8)
    for s_, d_ in rest[:nearly]:
        for x in s_:
            emit(x)
        emit(d_)
    rest = rest[nearly:]
    if CFG.get("offs"):
        msk, sl = CFG["offs"]
        emit(salu("s_and_b32", "s4", sB, msk))
        emit(label("L_offs"))
        emit(raw("s_cmp_eq_u32 s4, 0", "salu", {"scc"}, {"s4"}))
        emit(raw("s_cbranch_scc1 L_offe", "branch"))
        emit(raw(f"s_sleep {sl}", "salu"))
        emit(salu("s_sub_u32", "s4", "s4", 1))
        emit(raw("s_branch L_offs", "branch"))
        emit(label("L_offe"))
    emit(I("VMWAIT", "vmwait", meta={"chunks": [c.name for c in S[0].chunks], "lg": 0}))
    emit(raw("s_barrier", "barrier"))

    for st in S:
        st.build()
    start = [0]
    for st in S:
        start.append(start[-1] + len(st.mf))
    NM = start[-1]
    Ld = CFG["L"]
    bar = {i: start[i] - Ld for i in range(1, len(S))}
    bargap = {g: i for i, g in bar.items()}
    M = [m for st in S for m in st.mf]
    DS = []
    fr_lu = {}
    for i, st in enumerate(S):
        for d, u, f in st.ds:
            DS.append([d, start[i] + u, f, i])
            if isinstance(f, Frag):
                fr_lu[f.idx] = start[i] + f.lu
    newfrag = set(u for d, u, f, i in DS if not d.t.startswith("ds_read_b128 v"))

    stf = CFG.get("stf", "sc1")
    ldf = CFG.get("ldf", "sc1")

    def E_(name):
        return start[idx[name] + 1] - 1

    def S_(name):
        return start[idx[name]]

    epsalu = []
    sE, sE1, sFL, sD4 = "s16", "s17", "s18", "s19"
    epsalu.append(salu("s_and_b32", sD4, "s2", 0xfc))
    for p in range(1, 4):
        epsalu.append(salu("s_xor_b32", "s5", "s2", p))
        epsalu.append(salu("s_mul_i32", "s5", "s5", 12, scc=False))
        epsalu.append(salu("s_add_u32", "s5", "s5", sWV))
        epsalu.append(salu("s_add_u32", "s5", "s5", 4 * (p - 1)))
        epsalu.append(salu("s_mul_i32", f"s{sP+p-1}", "s5", 3584, scc=False))
        epsalu.append(salu("s_mul_i32", "s5", "s2", 12, scc=False))
        epsalu.append(salu("s_add_u32", "s5", "s5", sWV))
        epsalu.append(salu("s_add_u32", "s5", "s5", 4 * (p - 1)))
        epsalu.append(salu("s_mul_i32", f"s{sG+p-1}", "s5", 3584, scc=False))
    epsalu.append(salu("s_lshl_b32", sE, sB, 6))
    epsalu.append(salu("s_lshl_b32", "s5", sJ, 4))
    epsalu.append(salu("s_add_u32", sE, sE, "s5"))
    epsalu.append(salu("s_mul_i32", sE1, sBR, 896, scc=False))
    epsalu.append(salu("s_mul_i32", "s5", sWV, 224, scc=False))
    epsalu.append(salu("s_add_u32", sE1, sE1, "s5"))
    epsalu.append(salu("s_lshl_b32", sFL, "s2", 2))
    epsalu.append(salu("s_add_u32", sFL, sFL, sWV))
    epsalu.append(salu("s_lshl_b32", sFL, sFL, 7))
    epsalu.append(salu("s_add_u32", sFL, sFL, FLAGS))
    tasks = []
    checks = {}
    prevO = None
    for it in range(2):
        if it == 0:
            for db in range(8):
                tasks.append(Task(f"qfin0_{db}", task_qfin(db), S_("Q0_13") + 4 * db + 7, S_("K0_0") + max(2 * db - 2, -1)))
        tasks.append(Task(f"fmax{it}", task_firstmax(it), E_(f"K{it}_0") + 3, S_(f"K{it}_1") - 1))
        for j in range(16):
            if j < 14:
                end = S_(f"K{it}_{j+2}") - 1
            elif j == 14:
                end = min(E_(f"K{it}_15") + 8, S_(f"V{it}_0_0") - 1)
            else:
                end = S_(f"V{it}_0_0") - 1
            ming = E_(f"K{it}_{min(j+1, 15)}")
            cv0 = E_(f"Q1_{j-6}") if (it == 0 and j >= 6) else 0
            assert cv0 <= end
            allr = regs("v", sbuf(j, it), 16) | regs("v", sbuf(min(j + 1, 15), it), 16) | regs("v", E, 16) | regs("v", NEGM, 12) | regs("v", PX, 8 * (j + 1)) | {"vcc"}
            chk = I(f"s_cbranch_vccnz L_rare_{it}_{j}\nL_back_{it}_{j}:", "branch", allr, allr, {"ming": ming})
            cv = task_cvt(j)
            for x in cv:
                x.meta["ming"] = cv0
            tasks.append(Task(f"sm{it}_{j}", task_exp(sbuf(j, it)) + cv + task_chk() + [chk] +
                              [valu("v_add_f32", v(L_ + n), v(L_ + n), v(C_ + n)) for n in range(2)], E_(f"K{it}_{j}") + 3, end))
        tasks.append(Task(f"sfin{it}", task_sfin(), S_(f"V{it}_0_0"), S_(f"V{it}_0_3") - 1))
        if it == 0:
            q0_ = max(S_("V0_0_0"), S_("Q1_13") + 7)
            span = S_("O0_0_0") - 1 - q0_
            for db in range(8):
                tasks.append(Task(f"qfin1_{db}", task_qfin(db), max(q0_, S_("Q1_13") + 4 * db + 7), max(q0_ + (span * (db + 1)) // 8, S_("Q1_13") + 4 * db + 7)))
        for slab in range(4):
            for db in range(2):
                oname = f"O{it}_{slab}_{2*db}"
                dl = bar[idx[oname]] - 1
                if slab < 2:
                    dl = min(dl, S_(f"V{it}_{slab+2}_0") - 1)
                done = E_(f"V{it}_{slab}_3") + 3
                if it == 1 and slab == 3:
                    if db == 0:
                        a = [valu("v_add_u32", v(AK), fin_off & 0xffffffff, v(AXR))] + [valu("v_add_u32", v(AK + 1 + n), fin_off & 0xffffffff, v(AXW + n)) for n in range(2)]
                        tasks.append(Task("finadr", a, S_("V1_0_0"), S_("V1_1_0")))
                    tasks.append(Task(f"x{it}_{slab}_{db}", task_xmul(slab, db) + task_xw(slab, db, 8192 * db, AK + 1), done, dl))
                    continue
                e0 = done if prevO is None else max(done, bar[idx[prevO] + 1] + 0.5)
                assert e0 < dl, (oname, e0, dl)
                tasks.append(Task(f"xm{it}_{slab}_{db}", task_xmul(slab, db), done + db * 0.1, dl - 10))
                tasks.append(Task(f"xw{it}_{slab}_{db}", task_xw(slab, db), max(e0, done + 0.2), dl - 4))
                prevO = f"O{it}_{slab}_{2*db+1}"
    last = S_("O1_3_2")
    for tp in range(4):
        for p in range(1, 4):
            nt_ = 2 if tp < 3 else 1
            tb = 16 * ((3 * tp + p) % 6)
            a = []
            for u in range(nt_):
                for i in range(4):
                    a.append(valu("v_accvgpr_read_b32", v(tb + 4 * u + i), f"a{outacc(2*tp+u, p)+i}"))
            for u in range(nt_):
                for i in range(2):
                    a.append(valu("v_cvt_pk_bf16_f32", v(tb + 8 + 2 * u + i), v(tb + 4 * u + 2 * i), v(tb + 4 * u + 2 * i + 1)))
            if nt_ == 2:
                a.append(vstore("buffer_store_dwordx4", ("v", tb + 8, 4), VL, SW, f"s{sP+p-1}", tp * 1024, stf))
            else:
                a.append(vstore("buffer_store_dwordx2", ("v", tb + 8, 2), "v108", SW, f"s{sP+p-1}", 3072, stf))
            tasks.append(Task(f"pub{tp}_{p}", a, min(last + 8 * (2 * tp + nt_) + 3, NM - 1), NM - 1))
    ep = []
    ep.append(valu("v_lshrrev_b32", "v108", 1, VL))
    ep.append(valu("v_and_b32", "v100", 15, LANE))
    ep.append(valu("v_add_u32", "v100", sE, "v100"))
    ep.append(valu("v_mul_u32_u24", "v100", 1792, "v100"))
    ep.append(valu("v_add_u32", "v100", sE1, "v100"))
    ep.append(valu("v_lshrrev_b32", "v102", 4, LANE))
    ep.append(valu("v_lshl_add_u32", "v101", "v102", 3, "v100"))
    ep.append(valu("v_lshl_add_u32", "v100", "v102", 4, "v100"))
    ep.append(valu("v_mov_b32", "v103", 0x7ffffff0))
    ep.append(valu("v_cmp_eq_u32", "vcc", 0, LANE))
    ep.append(valu("v_mov_b32", "v104", sFL))
    ep.append(valu("v_mov_b32", "v105", 1))
    ep.append(valu("v_cndmask_b32", "v104", "v103", "v104", "vcc"))
    ep.append(valu("v_add_u32", "v106", 1, LANE))
    ep.append(valu("v_lshlrev_b32", "v106", 9, "v106"))
    ep.append(valu("v_xor_b32", "v106", sFL, "v106"))
    ep.append(valu("v_cmp_gt_u32", "vcc", 3, LANE))
    ep.append(valu("v_mov_b32", "v109", sD4))
    ep.append(valu("v_mov_b32", "v110", 0))
    ep.append(valu("v_cndmask_b32", "v106", "v103", "v106", "vcc"))
    ep.append(vload("buffer_load_dword", "v110", "v109", SDBG, 0, 0, "sc1"))
    tasks.append(Task("epadr", ep, S_("O1_2_3") + 2, S_("O1_3_1")))
    tasks.sort(key=lambda t: t.earliest)
    extra = {}
    TL = CFG.get("TL", 8)
    after = {}
    def place(first_use_chunk, ins):
        tgt = first_use_chunk.istep - TL
        best = None
        for k_ in range(len(S)):
            for c in win[k_]:
                if c.hbm and k_ <= max(tgt, 5):
                    best = c
        after.setdefault(best.name, []).append(ins)
    allc = {c.name: c for st in S for c in st.chunks}
    tf = CFG.get("tflags", "nt")
    for q in range(4):
        place(allc[f"q1_{(7*q)//2}_0"], ([salu("s_mov_b32", sOFF, q * 112 * 8192 + 1024, scc=False)], vload("buffer_load_dword", DUMMY, TQ, SQ, sOFF, 0, tf, track=False)))
    for it_ in range(2):
        for sl in range(4):
            place(allc[f"o{it_}_{sl}_0_0"], ([salu("s_mov_b32", sOFF, 480 + (it_ * 512 + sl * 64) * 896, scc=False)], vload("buffer_load_dword", DUMMY, TO, SO, sOFF, 0, tf, track=False)))
    clr = vstore("buffer_store_dword", v(TB + 7), v(TB + 6), SW, 0, 0, "sc1")
    clr.meta["chunk"] = "clr"
    extra[CFG.get("clr", "Q0_12")] = extra.get(CFG.get("clr", "Q0_12"), []) + [([], clr)]
    ann = idx[CFG.get("clr", "Q0_12")] + 8
    assert ann < idx["K0_5"]
    DQ = []

    def wstart(k):
        return bar[k] + 1 if k > 0 else 0

    def wend(k):
        return bar[k + 1] if k + 1 < len(S) else NM - 1
    if not CFG.get("smooth"):
        for k in range(len(S)):
            pcs = list(rest) if k == 0 else []
            pcs += list(extra.get(S[k].name, []))
            for c in win[k]:
                if c.typ in CFG.get("skip", ""):
                    continue
                pcs += c.pieces() + after.get(c.name, [])
            g0, g1 = wstart(k), wend(k)
            for n, (s_, d_) in enumerate(pcs):
                due = g0 + (n * (g1 - g0)) // max(len(pcs), 1)
                DQ.append([list(s_), d_, due, g0, g1])
    else:
        spH, spW, mind = CFG["smooth"]
        items = []
        for k in range(len(S)):
            g0 = wstart(k)
            for n, p_ in enumerate((list(rest) if k == 0 else []) + list(extra.get(S[k].name, []))):
                items.append((g0 + 4 * n, p_, g0, wend(k), None))
            byty = {True: [c for c in win[k] if c.hbm], False: [c for c in win[k] if not c.hbm]}
            for hb, cl_ in byty.items():
                pcs = []
                for c in cl_:
                    ps = c.pieces(full=True)
                    pcs += [(p_, c) for p_ in ps] + [(p_, c) for p_ in after.get(c.name, [])]
                if not pcs:
                    continue
                lead = min(c.cstep for c in cl_) - k
                nwin = max(1.0, min(spH if hb else spW, lead - (2 if hb else 1)))
                kk = min(k + int(math.ceil(nwin)) - 1, len(S) - 1)
                span = (wend(k) - g0) * nwin
                for n, (p_, c) in enumerate(pcs):
                    items.append((g0 + (n + 0.5) * span / len(pcs), p_, g0, wend(kk), c))
        items.sort(key=lambda x: x[0])
        ends = [x[3] for x in items]
        for n in range(len(ends) - 2, -1, -1):
            ends[n] = min(ends[n], ends[n + 1])
        lastdue = -99
        for n, (vt, (s_, d_), g0, g1, c) in enumerate(items):
            due = max(g0, lastdue + mind, int(vt) - 6)
            due = min(due, ends[n])
            lastdue = due
            DQ.append([list(s_), d_, due, g0, ends[n]])
    dqi = 0
    dsi = 0
    while dsi < len(DS) and DS[dsi][1] - Ld < 0:
        emit(DS[dsi][0])
        dsi += 1
    active = []
    ti = 0
    prev_ds = 0
    stats = dict(over=0, flush={})

    def pick(size, g):
        seen = []
        for t in active:
            for k, ins in enumerate(t.ins[:6]):
                if slots_of(ins) <= size and ins.meta.get("ming", 0) <= g and all(indep(ins, b) for b in seen):
                    if all(need_states(p, ins) <= d for d, p in enumerate(reversed(P[-3:]))):
                        return t.ins.pop(k)
                seen.append(ins)
            seen += t.ins[6:]
            if len(seen) > 40:
                break
        return None

    stop = CFG.get("stop")
    for g in range(NM):
        if stop and g == S_(stop):
            break
        if stamps and any(g == S_(n_) for n_ in stamps if n_ in idx):
            stamp()
        emit(M[g])
        while ti < len(tasks) and tasks[ti].earliest <= g:
            active.append(tasks[ti])
            ti += 1
        slots = 2
        sslot = (g + 1) not in newfrag
        lastdl = max([k for k, t in enumerate(active) if t.deadline <= g], default=-1)
        if g in bargap or g in checks:
            pass
        if lastdl >= 0:
            for t in active[:lastdl + 1]:
                if t.ins:
                    n = sum(slots_of(x) for x in t.ins)
                    stats["over"] += n
                    stats["flush"][t.name] = n
                for x in t.ins:
                    assert x.meta.get("ming", 0) <= g, (t.name, x.t, g)
                    emit(x)
                    slots -= slots_of(x)
                t.ins = []
            stats["over"] -= 2 - max(slots, 0)
            slots = max(slots, 0)
        if g in checks:
            it, j = checks[g]
            emit(raw(f"s_cbranch_vccnz L_rare_{it}_{j}", "branch", (), {"vcc"}))
            emit(label(f"L_back_{it}_{j}"))
        if g in bargap:
            i = bargap[g]
            while dqi < len(DQ) and DQ[dqi][4] <= g:
                for x in DQ[dqi][0]:
                    emit(x)
                emit(DQ[dqi][1])
                stats["over"] += 2
                dqi += 1
            if S[i - 1].name in CFG.get("probe", []):
                stamp()
                emit(wait(vm=0))
                stamp()
            early = any(c.rel == 1 for c in S[i - 1].chunks)
            emit(I("VMWAIT", "vmwait", meta={"chunks": [c.name for c in S[i].chunks] + (["clr"] if i == ann else []), "lg": 0 if early else "dsw"}))
            emit(raw("s_barrier", "barrier"))
            if i == ann:
                emit(raw(f"s_cmp_lg_u32 {sWV}, 0", "salu", {"scc"}, {sWV}))
                emit(raw("s_cbranch_scc1 L_noann", "branch"))
                emit(I(f"buffer_store_byte v{TB+5}, v{TB+4}, s[{SDBG}:{SDBG+3}], 0 offen sc1", "cond", (), {v(TB + 4), v(TB + 5)}))
                emit(label("L_noann"))
            if S[i].name == "V1_3_3":
                for x in epsalu:
                    emit(x)
            sslot = False
        want_dma = dqi < len(DQ) and DQ[dqi][2] <= g and not DQ[dqi][0]
        if sslot and dqi < len(DQ) and DQ[dqi][0] and DQ[dqi][3] <= g + 1:
            emit(DQ[dqi][0].pop(0))
            sslot = False
            if DQ[dqi][0] and slots > 0 and DQ[dqi][2] <= g + 2:
                emit(DQ[dqi][0].pop(0))
                slots -= 1
        nds = 0
        cap = 2 if prev_ds < 2 else 1
        while dsi < len(DS) and nds < cap:
            d, u, f, i = DS[dsi]
            if i > 0 and g < bar[i]:
                break
            if isinstance(f, Frag) and f.idx >= NFR and fr_lu[f.idx - NFR] > g:
                break
            if f == ("B", 1) and g < start[i] - 1:
                break
            due = u - Ld
            if nds == 1 and isinstance(f, Frag) and DS[dsi - 1][2] is f:
                pass
            elif due > g:
                break
            elif prev_ds == 2 and due > g - 2:
                break
            emit(d)
            dsi += 1
            nds += 1
        prev_ds = nds
        slots -= nds
        if slots == 2 and want_dma:
            emit(DQ[dqi][1])
            dqi += 1
            slots = 0
        while slots > 0:
            x = pick(slots, g)
            if x is None and slots == 1 and active and sum(slots_of(y) for y in active[0].ins) > 0.8 * (active[0].deadline - g):
                x = pick(2, g)
                if x is not None:
                    stats["over"] += 1
            if x is None:
                break
            emit(x)
            slots -= slots_of(x)
        active = [t for t in active if t.ins]
    if stop:
        emit(wait(vm=0, lg=0))
        emit(raw("s_barrier", "barrier"))
        emit(nop(15))
        dump = CFG["dump"]
        emit(salu("s_lshl_b32", "s4", "s2", 2))
        emit(salu("s_add_u32", "s4", "s4", sWV))
        emit(salu("s_mul_i32", "s4", "s4", 1024 * len(dump), scc=False))
        emit(salu("s_mov_b32", f"s{SW+2}", 0x10000000, scc=False))
        for k, (p_, r_) in enumerate(dump):
            emit(vstore("buffer_store_dwordx4", (p_, r_, 4), VL, SW, "s4"))
            emit(salu("s_add_u32", "s4", "s4", 1024))
        emit(wait(vm=0))
        emit(raw("s_branch L_end", "branch"))
    if "end" in stamps:
        stamp()
    for Tt in range(7):
        for i in range(4):
            emit(valu("v_accvgpr_read_b32", v(A0 + 4 * Tt + i), f"a{outacc(Tt, 0)+i}"))
    emit(salu("s_mov_b32", "s6", 0x100000, scc=False))
    emit(wait(vm=0))
    emit(vstore("buffer_store_dword", "v105", "v104", SW, 0, 0, "sc1"))
    if "pub" in stamps:
        stamp()
    emit(label("L_chk"))
    emit(I("v_readfirstlane_b32 s5, v110", "valu", {"s5"}, {"v110"}))
    emit(raw("s_cmp_eq_u32 s5, 0x01010101", "salu", {"scc"}, {"s5"}))
    emit(raw("s_cbranch_scc1 L_poll", "branch"))
    emit(I(f"buffer_load_dword v110, v109, s[{SDBG}:{SDBG+3}], 0 offen sc1", "cond", {"v110"}, {"v109"}))
    emit(wait(vm=0))
    emit(salu("s_sub_u32", "s6", "s6", 1))
    emit(raw("s_cbranch_scc0 L_chk", "branch"))
    emit(raw("s_branch L_go", "branch"))
    emit(label("L_poll"))
    emit(I(f"buffer_load_dword v107, v106, s[{SW}:{SW+3}], 0 offen sc1", "cond", {"v107"}, {"v106"}))
    emit(wait(vm=0))
    emit(valu("v_cmp_eq_u32", "vcc", 1, "v107"))
    emit(salu("s_sub_u32", "s6", "s6", 1))
    emit(raw("s_cbranch_scc1 L_go", "branch"))
    emit(raw("s_cmp_eq_u64 vcc, 7", "salu", {"scc"}, {"vcc"}))
    emit(raw("s_cbranch_scc0 L_poll", "branch"))
    emit(label("L_go"))
    if "go" in stamps:
        stamp()

    def fin_tile(Tt):
        d = E + 2 * Tt
        for i in range(2):
            emit(valu("v_cvt_pk_bf16_f32", v(d + i), v(A0 + 4 * Tt + 2 * i), v(A0 + 4 * Tt + 2 * i + 1)))
        if Tt % 2 == 1:
            b = d - 2
            emit(swap("v_permlane32_swap_b32", v(b), v(b + 2)))
            emit(swap("v_permlane32_swap_b32", v(b + 1), v(b + 3)))
            emit(swap("v_permlane16_swap_b32", v(b), v(b + 2)))
            emit(swap("v_permlane16_swap_b32", v(b + 1), v(b + 3)))
            emit(vstore("buffer_store_dwordx4", ("v", b, 4), "v100", SOUT, 0, (Tt - 1) * 32, CFG.get("outf", "")))
    for tp in range(4):
        for p in range(1, 4):
            if tp < 3:
                emit(vload("buffer_load_dwordx4", ("v", 12 * tp + 4 * (p - 1), 4), VL, SW, f"s{sG+p-1}", tp * 1024, ldf))
            else:
                emit(vload("buffer_load_dwordx2", ("v", 12 * tp + 4 * (p - 1), 2), "v108", SW, f"s{sG+p-1}", 3072, ldf))
    for tp in range(4):
        emit(wait(vm=3 * (3 - tp) + tp))
        for u in range(2 if tp < 3 else 1):
            Tt = 2 * tp + u
            for p in range(3):
                for i in range(2):
                    src = v(12 * tp + 4 * p + 2 * u + i)
                    emit(valu("v_lshlrev_b32", v(64), 16, src))
                    emit(valu("v_and_b32", v(65), 0xffff0000, src))
                    emit(valu("v_add_f32", v(A0 + 4 * Tt + 2 * i), v(A0 + 4 * Tt + 2 * i), v(64)))
                    emit(valu("v_add_f32", v(A0 + 4 * Tt + 2 * i + 1), v(A0 + 4 * Tt + 2 * i + 1), v(65)))
            fin_tile(Tt)
    emit(vstore("buffer_store_dwordx2", ("v", E + 12, 2), "v101", SOUT, 0, 192, CFG.get("outf", "")))
    if stamps:
        emit(wait(vm=0))
        stamp()
        emit(wait(lg=0))
        emit(salu("s_mov_b32", f"s{SW+2}", 0x10000000, scc=False))
        emit(salu("s_lshl_b32", "s4", "s2", 10))
        emit(salu("s_add_u32", "s4", "s4", 200000000))
        emit(raw(f"s_cmp_lg_u32 {sWV}, 0", "salu", {"scc"}, {sWV}))
        emit(raw("s_cbranch_scc1 L_end", "branch"))
        emit(valu("v_mov_b32", "v1", 0))
        for k in range(nst[0]):
            emit(valu("v_mov_b32", "v0", f"s{sregs[k]}"))
            emit(vstore("buffer_store_dword", "v0", "v1", SW, "s4", 4 * k))
        emit(wait(vm=0))
    emit(label("L_end"))
    emit(raw("s_endpgm", "branch"))
    main = P

    Rr = []
    r1, rt, F0 = "v251", "v253", 254
    variants = []
    for it in range(2):
        for j in range(16):
            if stop and not any(f"L_back_{it}_{j}:" in x.t for x in main):
                continue
            key = (sbuf(j, it), None if j == 15 else sbuf(j + 1, it))
            if key not in variants:
                variants.append(key)
            Rr.append(label(f"L_rare_{it}_{j}"))
            Rr.append(nop(9))
            Rr.append(raw(f"s_call_b64 s[{sRET}:{sRET+1}], L_rh_{variants.index(key)}", "branch"))
            Rr.append(raw(f"s_call_b64 s[{sRET}:{sRET+1}], L_pr_{j}", "branch"))
            Rr += task_cvt(j)
            Rr.append(nop(1))
            Rr.append(raw(f"s_branch L_back_{it}_{j}", "branch"))
    for var, (cur, nxt) in enumerate(variants):
        Rr.append(label(f"L_rh_{var}"))
        for n in range(2):
            r = cur + 8 * n
            Rr += max8(r1, r) + xlane("v_max_f32", r1, rt)
            Rr.append(valu("v_ceil_f32", r1, r1))
            Rr.append(valu("v_max_f32", r1, 0, r1))
            for i in range(4):
                Rr.append(valu("v_sub_f32", v(NEGM + 4 * n + i), v(NEGM + 4 * n + i), r1))
            for i in range(8):
                Rr.append(valu("v_sub_f32", v(r + i), v(r + i), r1))
                if nxt is not None:
                    Rr.append(valu("v_sub_f32", v(nxt + 8 * n + i), v(nxt + 8 * n + i), r1))
            Rr.append(valu("v_sub_f32", rt, 0, r1))
            Rr.append(trans("v_exp_f32", v(F0 + n), rt))
            Rr.append(valu("v_mul_f32", v(L_ + n), v(L_ + n), v(F0 + n)))
        Rr += task_exp(cur)
        Rr.append(nop(1))
        Rr.append(raw(f"s_setpc_b64 s[{sRET}:{sRET+1}]", "branch"))
    for k in range(15, 0, -1):
        Rr.append(label(f"L_pr_{k}"))
        for n in range(2):
            for i in range(4):
                pr = v(preg(k - 1, n) + i)
                Rr.append(valu("v_lshlrev_b32", r1, 16, pr))
                Rr.append(valu("v_and_b32", rt, 0xffff0000, pr))
                Rr.append(valu("v_mul_f32", r1, r1, v(F0 + n)))
                Rr.append(valu("v_mul_f32", rt, rt, v(F0 + n)))
                Rr.append(valu("v_cvt_pk_bf16_f32", pr, r1, rt))
    Rr.append(label("L_pr_0"))
    Rr.append(nop(1))
    Rr.append(raw(f"s_setpc_b64 s[{sRET}:{sRET+1}]", "branch"))

    res = []
    nvm = 0
    lastp = {}
    nds = 0
    lastw = None
    for ins in main:
        if ins.k == "vmwait":
            need = max(lastp.get(c, -1) for c in ins.meta["chunks"])
            vm = min(63, nvm - need - 1)
            if CFG.get("novm") and ins.meta["lg"] == "dsw":
                vm = 63
            lg = ins.meta["lg"]
            if lg == "dsw":
                lg = None if lastw is None else min(15, nds - lastw - 1)
                lastw = None
                if CFG.get("nolg"):
                    lg = None
            res.append(wait(vm=vm, lg=lg))
            continue
        if ins.k in VMEMK:
            if ins.meta.get("chunk"):
                lastp[ins.meta["chunk"]] = nvm
            nvm += 1
        if ins.k in ("dsr", "dsw"):
            if ins.k == "dsw":
                lastw = nds
            nds += 1
        res.append(ins)
    res, nw = insert_lgkm(res)
    log = []
    res, nn = pad_hazards(res, log)
    Rr, _ = pad_hazards(Rr)
    stats.update(waits=nw, nops=nn, noplog=log, n=len(res), nr=len(Rr))
    out = []
    out.append(HEADER)
    out.append(f"; @launch grid=(256,1,1) block=(256,1,1) lds={LDS_BYTES}")
    out.append('.amdgcn_target "amdgcn-amd-amdhsa--gfx950"')
    out += [".text", f".globl {NAME}", ".p2align 8", f".type {NAME},@function", f"{NAME}:"]
    out += [x.t for x in res]
    out.append("L_codeend:")
    out += [x.t for x in Rr]
    out += ['.section .rodata,"a"', ".p2align 6", f".amdhsa_kernel {NAME}", "  .amdhsa_next_free_vgpr 512",
            "  .amdhsa_next_free_sgpr 102", "  .amdhsa_accum_offset 256", "  .amdhsa_group_segment_fixed_size 0",
            "  .amdhsa_kernarg_size 104", "  .amdhsa_user_sgpr_count 2", "  .amdhsa_user_sgpr_kernarg_segment_ptr 1",
            "  .amdhsa_system_sgpr_workgroup_id_x 1", ".end_amdhsa_kernel"]
    return "\n".join(out) + "\n", stats, S, win


HEADER = """; Fused GQA attention block x2 (Q-proj, QK^T, softmax, PV, O-proj, cross-workgroup head reduction).
; kernarg: A_x A_k A_v A_wq A_wo B_x B_k B_v B_wq B_wo out debug ws (8 bytes each)"""

if __name__ == "__main__":
    import json
    cfg = json.loads(sys.argv[2]) if len(sys.argv) > 2 else {}
    txt, stats, S, win = gen(cfg)
    open(sys.argv[1], "w").write(txt)
    print("instrs", stats["n"], "rare", stats["nr"], "waits", stats["waits"], "nops", stats["nops"], "overflow slots", stats["over"], "bytes", len(txt))
    print("flush:", stats["flush"])
    print("noplog:", stats["noplog"][:40])
    if cfg.get("showplan"):
        for k in range(-1, len(S)):
            print(k, S[k].name if k >= 0 else "pro", [(c.name, c.slot, c.cstep - k) for c in win[k]])
```
